```python
import torch

def _softmax(x, axis=-1):
    return torch.softmax(x, dim=axis)
def _gelu(x):
    return torch.nn.functional.gelu(x, approximate="tanh")
def _silu(x):
    return torch.nn.functional.silu(x)
def _sigmoid(x):
    return torch.sigmoid(x)
def _layernorm(x, axis=-1, eps=1e-5):
    m = x.mean(dim=axis, keepdim=True)
    v = x.var(dim=axis, keepdim=True, unbiased=False)
    return (x - m) / torch.sqrt(v + eps)
def _scatter_add(tgt, idx, src, axis=0):
    return tgt.clone().index_add_(axis, idx, src)
def _segment_sum(src, seg, n):
    out = torch.zeros((n,) + src.shape[1:], dtype=src.dtype)
    return out.index_add_(0, seg, src)
def _pad(x, pw):
    flat = tuple(v for pair in reversed(pw) for v in pair)
    return torch.nn.functional.pad(x, flat)

kernel_name = 'gated_mix__sliding_block__moe_arch_mod__prompt'

def setup_inputs():

    _w = (lambda a: (lambda t: t.to(torch.bfloat16) if t.is_floating_point() else t)(torch.as_tensor(a)))
    def _A_setup():
        B, S, D = 1, 2048, 640
        return {
            "x": _w((lambda *s: torch.randn(*s, dtype=torch.bfloat16) * 0.05)(B, S, D)),
            "wqkv": _w((lambda *s: torch.randn(*s, dtype=torch.bfloat16) * 1.6)(D, 3 * D)),
            "wo": _w((lambda *s: torch.randn(*s, dtype=torch.bfloat16) * 0.05)(D, D)),
        }
    _A_in = _A_setup()

    def _B_setup():
        B, S, D, F, C = 1, 2048, 640, 1536, 2
        return {
            "x": _w((lambda *s: torch.randn(*s, dtype=torch.bfloat16) * 0.05)(B, S, D)),
            "w_r": _w((lambda *s: torch.randn(*s, dtype=torch.bfloat16) * 3.2)(D)),
            "w_gate": _w((lambda *s: torch.randn(*s, dtype=torch.bfloat16) * 0.4)(D, F)),
            "w_up": _w((lambda *s: torch.randn(*s, dtype=torch.bfloat16) * 0.4)(D, F)),
            "w_down": _w((lambda *s: torch.randn(*s, dtype=torch.bfloat16) * 0.4)(F, D)),
        }
    _B_in = _B_setup()

    return {
        "A_x": _A_in["x"],
        "A_wqkv": _A_in["wqkv"],
        "A_wo": _A_in["wo"],
        "B_x": _B_in["x"],
        "B_w_r": _B_in["w_r"],
        "B_w_gate": _B_in["w_gate"],
        "B_w_up": _B_in["w_up"],
        "B_w_down": _B_in["w_down"],
        "gate_w": _w((lambda *s: torch.randn(*s, dtype=torch.bfloat16) * 0.05)(640) * 16.0),
    }

def reference(A_x, A_wqkv, A_wo, B_x, B_w_r, B_w_gate, B_w_up, B_w_down, gate_w):
    def _A_ref(x, wqkv, wo):
        B, S, D = x.shape
        H = 32; Dh = D // H; W = 256
        qkv = (lambda x, *d: x.permute(*d))((x @ wqkv).reshape(B, S, 3, H, Dh), 2, 0, 3, 1, 4)
        q, k, v = qkv[0], qkv[1], qkv[2]
        scores = torch.einsum("bhqd,bhkd->bhqk", q, k) * (Dh ** -0.5)
        idx = torch.arange(S)
        mask = (idx[:, None] - idx[None, :] >= 0) & (idx[:, None] - idx[None, :] < W)
        scores = torch.where(mask[None, None], scores, -1e9)
        p = _softmax(scores, axis=-1)
        o = torch.einsum("bhqk,bhkd->bhqd", p, v)
        return (lambda x, *d: x.permute(*d))(o, 0, 2, 1, 3).reshape(B, S, D) @ wo

    def _B_ref(x, w_r, w_gate, w_up, w_down):
        B, S, D = x.shape
        C = 2
        r = x @ w_r
        idx = torch.argsort(-r, axis=-1)[:, :C]
        idx_e = (lambda x, n, axis: torch.repeat_interleave(x, n, dim=axis))(idx.reshape(B, C, 1), D, axis=2)
        x_sel = (lambda x, i, axis: torch.take_along_dim(x, i, dim=axis))(x, idx_e, axis=1)
        g = _silu(x_sel @ w_gate)
        u = x_sel @ w_up
        y = (g * u) @ w_down
        r_sel = _sigmoid((lambda x, i, axis: torch.take_along_dim(x, i, dim=axis))(r, idx, axis=1))
        y = y * r_sel.reshape(B, C, 1)
        b_off = (torch.arange(B) * S).reshape(B, 1)
        flat_idx = (idx + b_off).reshape(B * C)
        zero = (x * 0.0).reshape(B * S, D)
        upd = _scatter_add(zero, flat_idx, y.reshape(B * C, D), axis=0)
        return x + upd.reshape(B, S, D)

    x = A_x
    g = _sigmoid((x * gate_w).sum(-1, keepdims=True))
    a = _A_ref(x, A_wqkv, A_wo)
    b = _B_ref(x, B_w_r, B_w_gate, B_w_up, B_w_down)
    return g * a + (1 - g) * b
```

```python
import re

TRANS = ("v_exp_f32","v_log_f32","v_rcp_f32","v_rsq_f32","v_sqrt_f32","v_sin_f32","v_cos_f32","v_rcp_iflag_f32","v_exp_f16")
_reg = re.compile(r"^-?(?:abs\()?\|?([vsa])(?:(\d+)|\[(\d+):(\d+)\])\|?\)?$")

def regs(op):
    op = op.strip()
    if op == "vcc": return {"vcc"}
    if op in ("vcc_lo", "vcc_hi"): return {"vcc"}
    if op in ("exec", "exec_lo", "exec_hi"): return {"exec"}
    if op == "m0": return {"m0"}
    m = _reg.match(op)
    if not m: return set()
    k = m.group(1)
    if m.group(2) is not None: return {f"{k}{int(m.group(2))}"}
    return {f"{k}{i}" for i in range(int(m.group(3)), int(m.group(4))+1)}

class Ins:
    def __init__(self, text):
        self.text = text
        t = text.split(";")[0].strip()
        self.label = None; self.mn = None; self.target = None
        self.w = set(); self.r = set(); self.kind = "other"; self.states = 1
        self.srcc = set(); self.srcab = set(); self.passes = 0; self.stdata = set(); self.wide = False
        self.dpp = False; self.ldsdma = False; self.opsel = False
        if not t or t.startswith("."):
            self.kind = "dir"; self.states = 0; return
        if t.endswith(":"):
            self.label = t[:-1]; self.kind = "label"; self.states = 0; return
        sp = t.split(None, 1)
        mn = self.mn = sp[0]
        rest = sp[1] if len(sp) > 1 else ""
        parts = [p.strip() for p in re.split(r",(?![^\[\(]*[\]\)])", rest)] if rest else []
        mods = ""
        if parts:
            last = parts[-1].split(None, 1)
            parts[-1] = last[0]; mods = last[1] if len(last) > 1 else ""
        R = [regs(p) for p in parts]
        U = lambda l: set().union(*l) if l else set()
        if mn == "s_nop":
            self.states = int(parts[0], 0) + 1; self.kind = "nop"
        elif mn.startswith("v_mfma"):
            self.kind = "mfma"; self.w = R[0]; self.srcab = R[1] | R[2]; self.srcc = R[3]; self.r = self.srcab | self.srcc
            self.passes = 8 if "32x32" in mn else 4
        elif mn.startswith("v_"):
            self.kind = "valu"
            base = re.sub(r"_(e32|e64|dpp|sdwa)$", "", mn)
            self.base = base
            self.dpp = mn.endswith("_dpp"); self.opsel = mn.endswith("_sdwa") or "op_sel" in mods
            if base.startswith("v_permlane") or base == "v_swap_b32":
                self.w = R[0] | R[1]; self.r = R[0] | R[1]
            elif base in ("v_add_co_u32","v_sub_co_u32","v_addc_co_u32","v_subb_co_u32","v_subrev_co_u32","v_mad_u64_u32","v_div_scale_f32"):
                self.w = R[0] | R[1]; self.r = U(R[2:])
            else:
                self.w = R[0]; self.r = U(R[1:])
                if base.startswith("v_fmac") or base.startswith("v_pk_fmac") or base.startswith("v_dot2c") or self.dpp or base == "v_writelane_b32" or self.opsel: self.r |= R[0]
                if base.startswith("v_cmpx"): self.w |= {"exec"}
        elif mn.startswith("ds_"):
            self.kind = "ds"
            if mn.startswith("ds_read") or mn.startswith("ds_bpermute") or mn.startswith("ds_permute") or mn.startswith("ds_swizzle") or "_rtn" in mn:
                self.w = R[0]; self.r = U(R[1:])
            else: self.r = U(R)
        elif mn.startswith("buffer_"):
            self.kind = "vmem"
            if "lds" in mods.split():
                self.ldsdma = True; self.r = U(R) | {"m0"}
            elif mn.startswith("buffer_load"):
                self.w = R[0]; self.r = U(R[1:])
            elif mn.startswith("buffer_store") or mn.startswith("buffer_atomic"):
                self.r = U(R); self.stdata = R[0]; self.wide = mn.endswith("x3") or mn.endswith("x4")
                if mn.startswith("buffer_atomic") and "sc0" in mods.split(): self.w = R[0]
        elif mn.startswith("global_"):
            self.kind = "vmem"
            if mn.startswith("global_load_lds"):
                self.ldsdma = True; self.r = U(R) | {"m0"}
            elif mn.startswith("global_load"):
                self.w = R[0]; self.r = U(R[1:])
            else:
                self.r = U(R); self.stdata = R[1]; self.wide = mn.endswith("x3") or mn.endswith("x4")
        elif mn.startswith("s_"):
            self.kind = "salu"
            if mn.startswith("s_cbranch") or mn == "s_branch":
                self.kind = "branch"; self.target = parts[0]
            elif mn.startswith("s_cmp") or mn.startswith("s_bitcmp") or mn in ("s_waitcnt","s_barrier","s_setprio","s_sleep","s_endpgm"):
                self.r = U(R)
            elif mn.startswith("s_load") or mn.startswith("s_mem") or mn.startswith("s_buffer_load"):
                self.kind = "smem"; self.w = R[0]; self.r = U(R[1:])
            else:
                self.w = R[0]; self.r = U(R[1:])
                if "saveexec" in mn: self.w |= {"exec"}
        else:
            raise ValueError("unknown instruction: " + text)

def isv(x): return x[0] in "va" and x != "vcc"
def iss(x): return x[0] == "s" or x == "vcc"

def need(p, c):
    n = 0
    if p.kind == "valu":
        pv = {x for x in p.w if isv(x)}; ps = {x for x in p.w if iss(x)}
        if c.kind == "mfma":
            if pv & c.r: n = max(n, 2)
            if "exec" in p.w: n = max(n, 4)
        if c.kind == "vmem" and ps & c.r: n = max(n, 5)
        if c.kind == "valu":
            if ps & c.r: n = max(n, 4 if c.base in ("v_readlane_b32","v_writelane_b32","v_div_fmas_f32") else 2)
            if c.base == "v_div_fmas_f32" and "vcc" in ps: n = max(n, 4)
            if pv & c.r:
                if c.base in ("v_readlane_b32","v_readfirstlane_b32"): n = max(n, 1)
                if c.dpp or c.base.startswith("v_permlane"): n = max(n, 2)
                if p.base in TRANS: n = max(n, 1)
            if p.opsel and pv & (c.r | c.w): n = max(n, 1)
            if "exec" in p.w:
                if c.dpp: n = max(n, 5)
                if c.base in ("v_readlane_b32","v_readfirstlane_b32","v_writelane_b32") or c.base.startswith("v_permlane"): n = max(n, 4)
                if "exec" in c.r: n = max(n, 2)
    if p.kind == "mfma":
        big = p.passes == 8
        if c.kind == "mfma":
            if p.w & c.srcab: n = max(n, 12 if big else 8)
            if p.w & c.srcc and not (p.w == c.srcc and p.passes == c.passes): n = max(n, 10 if big else 6)
            if p.w & c.w and not (p.w & c.srcc): n = max(n, 10 if big else 6)
        elif c.kind in ("valu","ds","vmem"):
            if p.w & (c.r | c.w): n = max(n, 12 if big else 8)
            if c.kind == "valu" and p.srcc & c.w: n = max(n, 7 if big else 3)
            if c.kind in ("ds","vmem") and p.srcc & c.w: n = max(n, 7 if big else 3)
    if p.kind == "salu" and "m0" in p.w and c.ldsdma: n = max(n, 1)
    if p.kind == "vmem" and p.wide and p.stdata & c.w: n = max(n, 2 if c.kind in ("valu","mfma") else 1)
    return n

class Asm:
    def __init__(self): self.L = []
    def __call__(self, text):
        for t in text.split("\n"):
            if t.strip(): self.L.append(t.strip())
    def finish(self, verbose=False):
        I = [Ins(t) for t in self.L]
        MAXD = 13
        added = 0
        i = 0
        def build():
            lab = {x.label: k for k, x in enumerate(I) if x.label}
            br = {}
            for k, x in enumerate(I):
                if x.target: br.setdefault(lab[x.target], []).append(k)
            return br
        changed = True
        while changed:
            changed = False
            br = build()
            i = 0
            while i < len(I):
                c = I[i]
                if c.states == 0 or c.kind == "nop": i += 1; continue
                worst = 0
                stack = [(i, 0)]; seen = set()
                while stack:
                    k, d = stack.pop()
                    preds = []
                    if k > 0 and I[k-1].mn not in ("s_branch", "s_endpgm"): preds.append(k-1)
                    if I[k].label and k in br: preds += br[k]
                    for q in preds:
                        if (q, d) in seen: continue
                        seen.add((q, d))
                        p = I[q]
                        if p.states and p.kind != "nop":
                            worst = max(worst, need(p, c) - d)
                        nd = d + p.states
                        if nd < MAXD: stack.append((q, nd))
                if worst > 0:
                    if verbose: print("pad", worst, "before", c.text)
                    I.insert(i, Ins(f"s_nop {worst-1}")); added += worst; changed = True
                    br = build(); i += 1
                i += 1
        out = []
        for x in I:
            out.append(x.text if x.kind in ("label","dir") else "    " + x.text)
        return "\n".join(out) + "\n", added
```

```python
import sys, math
sys.path.insert(0, "dev")
from asmlib import Asm

NAME = "gated_mix__sliding_block__moe_arch_mod__prompt"
WS_QC = 0x000000; WS_KC = 0x280000; WS_VT = 0x500000; WS_OM = 0x780000; WS_OX = 0x980000
WS_G = 0xA00000
WS_FA = 0xA10000
WS_FB = 0xA60000
WS_FLG = 0xA80000
FL_Q, FL_A, FL_O, FL_B, FL_C = [WS_FLG + k*0x8000 for k in range(5)]
WS_STAMP = 0xB00000
WS_SIZE = 0xC00000
L_X = 0; L_W = 68*1024; L_FFA = 132*1024; L_FFB = 148*1024; L_AUX = 156*1024; L_CNT = 159*1024
L_WO = 16*1024; L_K = 116*1024; L_V = 140*1024; L_MISC = 0; L_RED = L_K
LDS_BYTES = 160*1024
SPIN = 30000
QSCALE = math.log2(math.e) / math.sqrt(20.0)
def f2u(x):
    import struct; return struct.unpack("<I", struct.pack("<f", x))[0]

sX, sWQ, sWS, sWO, sOUT, sWG, sWU, sWD, sDBG = 4, 8, 12, 16, 20, 24, 28, 32, 36
def srd(n): return f"s[{n}:{n+3}]"
sWAVE, sXCD, sIDX, sHG, sTQ, sI, sJ, sRB = 40, 41, 42, 43, 44, 45, 46, 47
sORD = 48
sROT = 50
sQB, sHEAD, sPAR = 51, 52, 53
sK0, sK1 = 54, 55
sFG, sKS = 56, 57
sT = [58, 59, 60, 61, 62, 63]
sVM = 88
sCNT = 90; sCNT2 = 91; sPASS = 92
sST = 64

ORDERS = [[0,4,1,2,3,8,5,6,7,9],[1,0,5,2,3,4,9,6,7,8],[2,0,1,6,3,4,5,7,8,9],[3,0,1,2,7,4,5,6,8,9]]

def gen(stamp=False, opts=None):
    o = dict(force_fallback=False)
    o.update(opts or {})
    a = Asm()
    uid = [0]
    def lab(p):
        uid[0] += 1; return f"L_{p}_{uid[0]}"
    def ST(n):
        if stamp: a(f"s_memrealtime s[{sST+2*n}:{sST+2*n+1}]")
    t0, t1, t2, t3, t4, t5 = [f"s{x}" for x in sT]

    def poll(load, cond, cnt=sCNT):
        l = lab("poll"); d = lab("polld")
        a(f"s_mov_b32 s{cnt}, 0")
        a(f"{l}:")
        a(load)
        a(f"s_add_u32 s{cnt}, s{cnt}, 1"); a(f"s_cmp_gt_u32 s{cnt}, {SPIN}")
        a("s_waitcnt vmcnt(0)")
        a(f"s_cbranch_scc1 {d}")
        a(cond)
        a(f"s_cbranch_vccnz {l}")
        a(f"{d}:")

    a("s_cmp_ge_u32 s2, 256"); a("s_cbranch_scc1 L_end")
    a("s_load_dwordx16 s[64:79], s[0:1], 0")
    a("s_load_dwordx8 s[80:87], s[0:1], 64")
    if stamp: a("s_memrealtime s[94:95]")
    a("s_getpc_b64 s[96:97]")
    a("v_lshrrev_b32 v1, 6, v0"); a("v_and_b32 v0, 63, v0")
    a(f"s_and_b32 s{sXCD}, s2, 7"); a(f"s_lshr_b32 s{sIDX}, s2, 3")
    a(f"v_readfirstlane_b32 s{sWAVE}, v1")
    a(f"s_lshl_b32 {t0}, s{sIDX}, 3"); a(f"v_add_u32 v1, {t0}, v1"); a("v_lshlrev_b32 v1, 7, v1")
    a("v_min_u32 v1, CODE_BYTES, v1")
    a("global_load_dword v200, v1, s[96:97]")
    a(f"s_lshr_b32 s{sHG}, s{sXCD}, 2"); a(f"s_and_b32 s{sTQ}, s{sXCD}, 3")
    a(f"s_and_b32 s{sI}, s{sIDX}, 3"); a(f"s_lshr_b32 s{sJ}, s{sIDX}, 2")
    a(f"s_lshl_b32 s{sRB}, s{sTQ}, 2"); a(f"s_add_u32 s{sRB}, s{sRB}, s{sI}")
    a(f"s_add_u32 {t0}, s{sI}, s{sJ}"); a(f"s_and_b32 {t0}, {t0}, 3")
    for g, od in enumerate(ORDERS):
        v = sum(s << (4*n) for n, s in enumerate(od))
        if g == 0:
            a(f"s_mov_b32 s{sORD}, {v & 0xffffffff}"); a(f"s_mov_b32 s{sORD+1}, {v >> 32}")
        else:
            a(f"s_cmp_eq_u32 {t0}, {g}")
            a(f"s_cselect_b32 s{sORD}, {v & 0xffffffff}, s{sORD}"); a(f"s_cselect_b32 s{sORD+1}, {v >> 32}, s{sORD+1}")
    a(f"s_mul_i32 s{sROT}, s{sXCD}, 5"); a(f"s_lshr_b32 s{sROT}, s{sROT}, 2")
    def next_stage(dst):
        a(f"s_and_b32 {dst}, s{sORD}, 15"); a(f"s_lshr_b64 s[{sORD}:{sORD+1}], s[{sORD}:{sORD+1}], 4")
        a(f"s_add_u32 {dst}, {dst}, s{sROT}"); a(f"s_sub_u32 {t5}, {dst}, 10"); a(f"s_cmp_ge_u32 {dst}, 10"); a(f"s_cselect_b32 {dst}, {t5}, {dst}")
    def group_col(dst, grp):
        a(f"s_mul_i32 {t4}, {grp}, 52"); a(f"s_lshr_b32 {t4}, {t4}, 8")
        a(f"s_mul_i32 {t5}, {t4}, 320"); a(f"s_lshl_b32 {dst}, {grp}, 6"); a(f"s_add_u32 {dst}, {dst}, {t5}")
        a(f"s_mul_i32 {t5}, s{sHG}, 320"); a(f"s_add_u32 {dst}, {dst}, {t5}")
    def build_srds():
        for (r, src, n) in [(sX,64,2621440),(sWQ,66,2457600),(sWS,86,WS_SIZE),(sWO,68,819200),(sOUT,82,2621440),(sWG,74,1966080),(sWU,76,1966080),(sWD,78,1966080),(sDBG,84,256)]:
            a(f"s_mov_b32 s{r}, s{src}"); a(f"s_mov_b32 s{r+1}, s{src+1}"); a(f"s_mov_b32 s{r+2}, {n}"); a(f"s_mov_b32 s{r+3}, 0x20000")
    def roles():
        a(f"s_and_b32 {t0}, s{sIDX}, 1"); a(f"s_lshl_b32 s{sQB}, s{sTQ}, 1"); a(f"s_add_u32 s{sQB}, s{sQB}, {t0}")
        a(f"s_lshr_b32 {t0}, s{sIDX}, 1"); a(f"s_lshl_b32 s{sHEAD}, s{sHG}, 4"); a(f"s_add_u32 s{sHEAD}, s{sHEAD}, {t0}")
        a(f"s_and_b32 s{sPAR}, s{sHEAD}, 1")
        a(f"s_mul_i32 {t0}, s{sIDX}, 26"); a(f"s_lshr_b32 {t0}, {t0}, 8")
        a(f"s_mul_i32 {t1}, {t0}, 10"); a(f"s_sub_u32 s{sKS}, s{sIDX}, {t1}")
        a(f"s_mul_i32 s{sFG}, s{sXCD}, 3"); a(f"s_add_u32 s{sFG}, s{sFG}, {t0}")
        a(f"s_mov_b32 s{sVM}, 0x000fffff"); a(f"s_mov_b32 s{sVM+1}, 0x000fffff")
    a(f"s_cmp_lt_u32 s{sWAVE}, 4"); a("s_cbranch_scc1 L_compute")

    LW = "s3"
    a(f"s_sub_u32 {LW}, s{sWAVE}, 4")
    a("v_lshrrev_b32 v3, 3, v0"); a("v_and_b32 v4, 7, v0"); a("v_lshrrev_b32 v5, 4, v0")
    a("v_xor_b32 v6, v4, v5"); a("v_lshlrev_b32 v6, 4, v6")
    a(f"s_lshl_b32 {t0}, s{sRB}, 7"); a(f"s_lshl_b32 {t1}, {LW}, 5"); a(f"s_add_u32 {t0}, {t0}, {t1}")
    a(f"v_add_u32 v7, {t0}, v3"); a("v_mul_u32_u24 v7, 1280, v7")
    a("v_add_u32 v10, v7, v6"); a("v_xor_b32 v6, 64, v6"); a("v_add_u32 v11, v7, v6"); a(f"v_add_u32 v11, {8*1280}, v11")
    a(f"v_add_u32 v12, {16*1280}, v10"); a(f"v_add_u32 v13, {16*1280}, v11")
    a("v_and_b32 v5, 1, v5"); a("v_lshlrev_b32 v5, 2, v5"); a("v_xor_b32 v6, v4, v5"); a("v_lshlrev_b32 v6, 4, v6")
    a(f"s_lshr_b32 {t0}, {LW}, 1"); a(f"s_lshl_b32 {t1}, s{sJ}, 1"); a(f"s_add_u32 {t1}, {t1}, {t0}")
    group_col(t2, t1)
    a(f"s_lshl_b32 {t2}, {t2}, 1")
    a(f"s_and_b32 {t0}, {LW}, 1"); a(f"s_mul_i32 {t0}, {t0}, {32*3840}"); a(f"s_add_u32 {t2}, {t2}, {t0}")
    a("v_mul_u32_u24 v7, 3840, v3"); a(f"v_add3_u32 v14, v7, v6, {t2}")
    for i in range(1, 4): a(f"v_add_u32 v{14+i}, {i*8*3840}, v14")
    a(f"s_lshl_b32 s93, {LW}, 12")
    a("s_waitcnt lgkmcnt(0)")
    for (r, src, n) in [(sX,64,2621440),(sWQ,66,2457600)]:
        a(f"s_mov_b32 s{r}, s{src}"); a(f"s_mov_b32 s{r+1}, s{src+1}"); a(f"s_mov_b32 s{r+2}, {n}"); a(f"s_mov_b32 s{r+3}, 0x20000")
    a(f"s_mov_b32 s{sCNT}, 0")
    a(f"s_cmp_eq_u32 {t1}, 15"); a("s_cbranch_scc1 L_ld_x")
    for variant in ("xw", "x"):
        per = 8 if variant == "xw" else 4
        a(f"L_ld_{variant}:")
        next_stage(t0)
        a(f"s_lshl_b32 {t1}, {t0}, 7"); a(f"s_mul_i32 {t2}, {t0}, {64*3840}")
        a(f"s_add_u32 {t3}, s{sCNT}, 3"); a(f"s_and_b32 {t3}, {t3}, 3"); a(f"s_lshl_b32 {t3}, {t3}, 14"); a(f"s_add_u32 {t3}, {t3}, s93")
        for i in range(4):
            a(f"s_add_u32 m0, {t3}, {L_X + i*1024}")
            a(f"buffer_load_dwordx4 v{10+i}, {srd(sX)}, {t1} offen lds")
        if variant == "xw":
            a(f"s_add_u32 {t3}, s{sCNT}, 2"); a(f"s_and_b32 {t3}, {t3}, 3"); a(f"s_lshl_b32 {t3}, {t3}, 14"); a(f"s_add_u32 {t3}, {t3}, s93")
            for i in range(4):
                a(f"s_add_u32 m0, {t3}, {L_W + i*1024}")
                a(f"buffer_load_dwordx4 v{14+i}, {srd(sWQ)}, {t2} offen lds")
        a(f"s_add_u32 s{sCNT}, s{sCNT}, 1")
        a(f"s_cmp_lt_u32 s{sCNT}, 3"); a(f"s_cbranch_scc1 L_ld_{variant}")
        a(f"s_waitcnt vmcnt({2*per})"); a("s_barrier")
        a(f"s_cmp_lt_u32 s{sCNT}, 10"); a(f"s_cbranch_scc1 L_ld_{variant}")
        a(f"s_waitcnt vmcnt({per})"); a("s_barrier")
        if variant == "xw": a("s_branch L_ld_tail")
    a("L_ld_tail:")
    build_srds(); roles()
    a("v_lshlrev_b32 v6, 4, v4")
    a(f"s_lshl_b32 {t0}, {LW}, 4"); a(f"v_add_u32 v7, {t0}, v3")
    a("v_mul_u32_u24 v8, 3072, v7"); a("v_add_u32 v8, v8, v6"); a(f"v_add_u32 v9, {8*3072}, v8")
    a("v_mul_u32_u24 v10, 1280, v7"); a("v_add_u32 v10, v10, v6"); a(f"v_add_u32 v11, {8*1280}, v10")
    a(f"s_mul_i32 {t1}, s{sKS}, {64*3072}"); a(f"s_lshl_b32 {t2}, s{sFG}, 7"); a(f"s_add_u32 {t1}, {t1}, {t2}")
    a(f"s_mul_i32 {t2}, s{sFG}, {64*1280}"); a(f"s_lshl_b32 {t3}, s{sKS}, 7"); a(f"s_add_u32 {t2}, {t2}, {t3}")
    a(f"s_lshl_b32 {t3}, {LW}, 11")
    a(f"s_cmp_ge_u32 s{sIDX}, 30"); a("s_cbranch_scc1 L_ld_noffn")
    for (base, sr, v, so) in [(L_FFA, sWG, 8, t1), (L_FFA + 8192, sWU, 8, t1), (L_FFB, sWD, 10, t2)]:
        for i in range(2):
            a(f"s_add_u32 m0, {t3}, {base + i*1024}")
            a(f"buffer_load_dwordx4 v{v+i}, {srd(sr)}, {so} offen lds")
    a("s_waitcnt vmcnt(6)"); a("s_branch L_ld_b9")
    a("L_ld_noffn:")
    a("s_waitcnt vmcnt(0)")
    a("L_ld_b9:")
    a("s_barrier")
    ST(0)
    a(f"s_cmp_ge_u32 s{sIDX}, 30"); a("s_cbranch_scc1 L_ld_wo")
    def load_top2():
        a("v_and_b32 v20, 15, v0")
        a("v_lshlrev_b32 v20, 7, v20"); a(f"v_add_u32 v20, {FL_C}, v20")
        poll(f"buffer_load_dwordx2 v[22:23], v20, {srd(sWS)}, 0 offen sc1", "v_cmp_eq_u32 vcc, 0, v23")
        def rmax(dst, src):
            a(f"v_max_u32_dpp {dst}, {src}, {src} row_ror:8 row_mask:0xf bank_mask:0xf")
            for sh in (4, 2, 1): a(f"v_max_u32_dpp {dst}, {dst}, {dst} row_ror:{sh} row_mask:0xf bank_mask:0xf")
        rmax("v24", "v22")
        a("v_cmp_eq_u32 vcc, v24, v22"); a("v_cndmask_b32 v22, v22, v23, vcc")
        rmax("v25", "v22")
        a(f"v_readfirstlane_b32 s{sK0}, v24"); a(f"v_readfirstlane_b32 s{sK1}, v25")
    load_top2()
    ST(1)
    a(f"v_mov_b32 v26, {L_CNT+4}"); a("v_mov_b32 v27, 1")
    a("s_mov_b64 exec, 1"); a("ds_add_u32 v26, v27"); a("s_mov_b64 exec, -1")
    a(f"s_not_b32 {t0}, s{sK0}"); a(f"s_and_b32 {t0}, {t0}, 2047"); a(f"s_mul_i32 {t0}, {t0}, 1280")
    a(f"s_not_b32 {t1}, s{sK1}"); a(f"s_and_b32 {t1}, {t1}, 2047"); a(f"s_mul_i32 {t1}, {t1}, 1280")
    a("v_and_b32 v20, 1, v0"); a("v_cmp_eq_u32 vcc, 1, v20"); a(f"v_mov_b32 v20, {t0}"); a(f"v_mov_b32 v21, {t1}")
    a("v_cndmask_b32 v20, v20, v21, vcc"); a("v_and_b32 v21, 48, v0"); a("v_add_u32 v20, v20, v21")
    a(f"s_lshl_b32 {t0}, s{sKS}, 7")
    a(f"buffer_load_dwordx4 v[28:31], v20, {srd(sX)}, {t0} offen")
    a(f"buffer_load_dwordx4 v[32:35], v20, {srd(sX)}, {t0} offen offset:64")
    l = lab("cw"); d = lab("cwd")
    a(f"s_mov_b32 s{sCNT}, 0")
    a(f"{l}:"); a("ds_read_b32 v27, v26"); a(f"s_add_u32 s{sCNT}, s{sCNT}, 1"); a(f"s_cmp_gt_u32 s{sCNT}, {SPIN*8}")
    a("s_waitcnt lgkmcnt(0)"); a(f"s_cbranch_scc1 {d}"); a("v_cmp_gt_u32 vcc, 4, v27"); a(f"s_cbranch_vccnz {l}"); a(f"{d}:")
    a("v_lshrrev_b32 v21, 4, v0"); a("v_lshlrev_b32 v21, 3, v21"); a("v_bfe_u32 v22, v0, 2, 2"); a("v_add_u32 v21, v21, v22")
    a("v_lshlrev_b32 v21, 7, v21"); a("v_and_b32 v22, 3, v0"); a("v_lshl_add_u32 v21, v22, 3, v21")
    a(f"s_lshl_b32 {t0}, {LW}, 5"); a(f"s_add_u32 {t0}, {t0}, {L_FFA}"); a(f"v_add_u32 v22, {t0}, v21")
    for mat in range(2):
        for s in range(2):
            for jj in range(2):
                r = 36 + mat*8 + s*4 + jj*2
                a(f"ds_read_b64_tr_b16 v[{r}:{r+1}], v22 offset:{mat*8192 + (32*s + 4*jj)*128}")
    a(f"s_cmp_lg_u32 {LW}, 0"); a("s_cbranch_scc1 L_ffa_nob")
    a(f"v_add_u32 v22, {L_FFB}, v21")
    a("s_waitcnt lgkmcnt(0)")
    for ct in range(4):
        for s in range(2):
            for jj in range(2):
                r = 224 + ct*8 + s*4 + jj*2
                a(f"ds_read_b64_tr_b16 v[{r}:{r+1}], v22 offset:{ct*32 + (32*s + 4*jj)*128}")
        if ct == 1: a("s_waitcnt lgkmcnt(0)")
    a("L_ffa_nob:")
    a("s_waitcnt vmcnt(0) lgkmcnt(0)")
    for mat in range(2):
        a(f"v_mfma_f32_16x16x32_bf16 v[{52+mat*4}:{55+mat*4}], v[{36+mat*8}:{39+mat*8}], v[28:31], 0")
    for mat in range(2):
        a(f"v_mfma_f32_16x16x32_bf16 v[{52+mat*4}:{55+mat*4}], v[{40+mat*8}:{43+mat*8}], v[32:35], v[{52+mat*4}:{55+mat*4}]")
    a("v_and_b32 v20, 1, v0"); a("v_lshlrev_b32 v20, 8, v20"); a("v_and_b32 v21, 48, v0"); a("v_add_u32 v20, v20, v21")
    a(f"s_mul_i32 {t0}, s{sFG}, 10"); a(f"s_add_u32 {t0}, {t0}, s{sKS}"); a(f"s_lshl_b32 {t0}, {t0}, 10")
    a(f"s_lshl_b32 {t1}, {LW}, 6"); a(f"s_add_u32 {t0}, {t0}, {t1}"); a(f"s_add_u32 {t0}, {t0}, {WS_FA}")
    a("s_mov_b32 exec_lo, 0x00030003"); a("s_mov_b32 exec_hi, 0x00030003")
    a(f"buffer_store_dwordx4 v[52:55], v20, {srd(sWS)}, {t0} offen sc1")
    a(f"buffer_store_dwordx4 v[56:59], v20, {srd(sWS)}, {t0} offen offset:512 sc1")
    a("s_mov_b64 exec, 1")
    a(f"s_lshl_b32 {t0}, s2, 7"); a(f"s_lshl_b32 {t1}, {LW}, 2"); a(f"s_add_u32 {t0}, {t0}, {t1}"); a(f"s_add_u32 {t0}, {t0}, {FL_A}")
    a("v_mov_b32 v20, 0"); a("v_mov_b32 v21, 1")
    a("s_waitcnt vmcnt(0)")
    a(f"buffer_store_dword v21, v20, {srd(sWS)}, {t0} offen sc1")
    a("s_mov_b64 exec, -1")
    ST(2)
    a("L_ld_wo:")
    for i in range(5):
        a(f"v_add_u32 v20, {64*i}, v0"); a("v_mul_u32_u24 v21, 6554, v20"); a("v_lshrrev_b32 v21, 16, v21")
        a("v_mul_u32_u24 v22, 10, v21"); a("v_sub_u32 v22, v20, v22"); a("v_lshlrev_b32 v22, 4, v22")
        a("v_mul_u32_u24 v21, 1280, v21"); a(f"v_add_u32 v{10+i}, v21, v22")
    a(f"s_mul_i32 {t0}, s{sJ}, 160")
    a(f"s_add_u32 {t2}, {LW}, s{sI}"); a(f"s_and_b32 {t2}, {t2}, 3")
    a(f"s_mul_i32 {t1}, {t2}, {160*1280}"); a(f"s_add_u32 {t0}, {t0}, {t1}")
    a(f"s_mul_i32 {t1}, {t2}, {160*160}"); a(f"s_add_u32 {t1}, {t1}, {L_WO}")
    a(f"s_mov_b32 s{sCNT}, 0")
    a("L_wo_loop:")
    for i in range(5):
        a(f"s_add_u32 m0, {t1}, {i*1024}")
        a(f"buffer_load_dwordx4 v{10+i}, {srd(sWO)}, {t0} offen lds")
    a(f"s_add_u32 {t0}, {t0}, {32*1280}"); a(f"s_add_u32 {t1}, {t1}, 5120")
    a(f"s_add_u32 s{sCNT}, s{sCNT}, 1"); a(f"s_cmp_lt_u32 s{sCNT}, 5"); a("s_cbranch_scc1 L_wo_loop")
    ST(3)
    a("s_branch L_att")

    a("L_compute:")
    WR, WC = "s3", "s93"
    a(f"s_and_b32 {WR}, s{sWAVE}, 1"); a(f"s_lshr_b32 {WC}, s{sWAVE}, 1")
    a("s_waitcnt lgkmcnt(0)")
    build_srds(); roles()
    a(f"s_cmp_lg_u32 s{sWAVE}, 0"); a("s_cbranch_scc1 L_noclr")
    a("v_mov_b32 v4, 0"); a("v_mov_b32 v5, 0"); a("v_mov_b32 v6, 0"); a("v_mov_b32 v7, 0")
    a("v_lshlrev_b32 v3, 15, v0"); a(f"s_lshl_b32 {t0}, s2, 7"); a(f"s_add_u32 {t0}, {t0}, {WS_FLG}")
    a(f"v_mov_b32 v8, {L_CNT}")
    a("s_mov_b64 exec, 31")
    a(f"buffer_store_dwordx4 v[4:7], v3, {srd(sWS)}, {t0} offen sc1")
    a("s_mov_b64 exec, 1")
    a("ds_write_b128 v8, v[4:7]")
    a(f"s_getreg_b32 {t1}, hwreg(HW_REG_XCC_ID, 0, 4)"); a(f"s_add_u32 {t1}, {t1}, 1")
    a(f"v_mov_b32 v9, {t1}"); a("v_mov_b32 v3, s2")
    a("s_waitcnt vmcnt(0) lgkmcnt(0)")
    a(f"buffer_store_byte v9, v3, {srd(sDBG)}, 0 offen sc1")
    a("s_mov_b64 exec, -1")
    a("L_noclr:")
    a("v_and_b32 v10, 31, v0"); a("v_lshrrev_b32 v11, 5, v0"); a("v_bfe_u32 v12, v0, 1, 3"); a("v_xor_b32 v12, v12, v11")
    a("v_lshlrev_b32 v12, 4, v12"); a("v_lshl_add_u32 v2, v10, 7, v12")
    a(f"s_lshl_b32 {t1}, s{sJ}, 1"); a(f"s_add_u32 {t1}, {t1}, {WC}")
    a(f"s_cmp_eq_u32 {t1}, 15"); a("s_cbranch_scc1 L_aux")
    a(f"s_lshl_b32 {t0}, {WR}, 13"); a(f"v_add_u32 v2, {t0}, v2")
    for ks in range(1, 4): a(f"v_xor_b32 v{2+ks}, {ks << 5}, v2")
    a("v_bfe_u32 v12, v0, 2, 2"); a("v_lshl_add_u32 v13, v11, 3, v12"); a("v_lshlrev_b32 v13, 7, v13")
    a("v_bfe_u32 v14, v0, 3, 1"); a("v_lshl_add_u32 v13, v14, 6, v13")
    a("v_bfe_u32 v14, v0, 4, 1"); a("v_lshl_add_u32 v13, v14, 5, v13")
    a(f"s_lshl_b32 {t0}, {WC}, 13"); a(f"s_add_u32 {t0}, {t0}, {L_W}"); a(f"v_add_u32 v13, {t0}, v13")
    a("v_lshlrev_b32 v9, 2, v0")
    group_col(t2, t1)
    a(f"s_cmp_ge_u32 {t1}, 10"); a("s_cbranch_scc1 L_gemm_v")

    XF = lambda b, tr: f"v[{16+b*16+tr*4}:{19+b*16+tr*4}]"
    WF = lambda b, tc: (24+b*16+tc*4)
    ACC = lambda tr, tc: f"v[{64+(tr*2+tc)*16}:{79+(tr*2+tc)*16}]"
    def arrival_check():
        a("s_waitcnt vmcnt(0)")
        cond = "v_subrev_u32 v49, 0x01010101, v48\nv_not_b32 v48, v48\nv_and_b32 v49, v49, v48\nv_and_b32 v49, 0x80808080, v49\nv_cmp_ne_u32 vcc, 0, v49"
        d = lab("arr")
        a(cond); a(f"s_cbranch_vccz {d}")
        poll(f"buffer_load_dword v48, v9, {srd(sDBG)}, 0 offen sc1", cond)
        a(f"{d}:")
    def gemm1(swapped):
        def reads(q):
            s, ks, b = q >> 2, q & 3, q & 1
            xs, wsl = (s+3) & 3, (s+2) & 3
            for tr in range(2): a(f"ds_read_b128 {XF(b,tr)}, v{2+ks} offset:{xs*16384 + tr*4096}")
            for tc in range(2):
                for j in range(2):
                    r = WF(b, tc) + 2*j
                    a(f"ds_read_b64_tr_b16 v[{r}:{r+1}], v{6+tc} offset:{wsl*16384 + (16*ks + 4*j)*128}")
        a("s_barrier"); reads(0)
        for q in range(40):
            b = q & 1
            if q == 24: a(f"buffer_load_dword v48, v9, {srd(sDBG)}, 0 offen sc1")
            if q + 1 < 40:
                if (q+1) & 3 == 0:
                    if q == 35: arrival_check()
                    a("s_waitcnt lgkmcnt(0)"); a("s_barrier"); reads(q+1)
                else:
                    reads(q+1); a("s_waitcnt lgkmcnt(6)")
            else: a("s_waitcnt lgkmcnt(0)")
            for tr in range(2):
                for tc in range(2):
                    w = f"v[{WF(b,tc)}:{WF(b,tc)+3}]"
                    A, B = (w, XF(b,tr)) if swapped else (XF(b,tr), w)
                    a(f"v_mfma_f32_32x32x16_bf16 {ACC(tr,tc)}, {A}, {B}, {ACC(tr,tc) if q else '0'}")
    def pack(tr, tc, u, scale):
        base = 64 + (tr*2+tc)*16 + u*8
        dst = 16 + ((tr*2+tc)*2+u)*4
        for k in range(4):
            if scale: a(f"v_pk_mul_f32 v[{base+2*k}:{base+2*k+1}], v[{base+2*k}:{base+2*k+1}], s[{sT[0]}:{sT[1]}]")
            a(f"v_cvt_pk_bf16_f32 v{dst+k}, v{base+2*k}, v{base+2*k+1}")
        return f"v[{dst}:{dst+3}]"
    a("v_bfe_u32 v14, v0, 0, 1"); a("v_lshl_add_u32 v13, v14, 4, v13"); a("v_bfe_u32 v14, v0, 1, 1"); a("v_lshl_add_u32 v6, v14, 3, v13")
    a("v_xor_b32 v7, 64, v6")
    a("v_lshlrev_b32 v8, 15, v11"); a("v_lshl_add_u32 v8, v10, 4, v8")
    a(f"s_lshl_b32 s98, {t2}, 12"); a(f"s_lshl_b32 {t3}, s{sRB}, 11"); a(f"s_add_u32 s98, s98, {t3}"); a(f"s_lshl_b32 {t3}, {WR}, 10"); a(f"s_add_u32 s98, s98, {t3}")
    a(f"s_cmp_lt_u32 {t1}, 5"); a(f"s_cselect_b32 s99, {f2u(QSCALE)}, 1.0")
    gemm1(True)
    ST(0)
    a(f"s_mov_b32 {t0}, s99"); a(f"s_mov_b32 {t1}, s99")
    for tr in range(2):
        for tc in range(2):
            for u in range(2):
                r = pack(tr, tc, u, True)
                a(f"s_add_u32 {t2}, s98, {(4*tc + 2*u)*32768}")
                a(f"buffer_store_dwordx4 {r}, v8, {srd(sWS)}, {t2} offen offset:{tr*512} sc1")
    a("s_branch L_g1done")
    a("L_gemm_v:")
    a("v_and_b32 v14, 3, v0"); a("v_lshl_add_u32 v6, v14, 3, v13"); a("v_xor_b32 v7, 64, v6")
    a(f"s_sub_u32 {t2}, {t2}, 1280")
    for tc in range(2):
        a(f"v_add_u32 v12, {t2}, v10")
        if tc: a("v_add_u32 v12, 32, v12")
        a("v_mul_u32_u24 v13, 3277, v12"); a("v_lshrrev_b32 v13, 16, v13")
        a("v_mul_u32_u24 v14, 20, v13"); a("v_sub_u32 v14, v12, v14")
        a("v_mul_u32_u24 v13, 81920, v13"); a("v_lshl_add_u32 v13, v14, 4, v13")
        a("v_mul_u32_u24 v14, 320, v11"); a(f"v_add_u32 v{(8, 15)[tc]}, v13, v14")
    a(f"s_lshl_b32 {t3}, s{sRB}, 1"); a(f"s_add_u32 {t3}, {t3}, {WR}"); a(f"s_mul_i32 s98, {t3}, 2560"); a(f"s_add_u32 s98, s98, {WS_VT}")
    gemm1(False)
    ST(0)
    for tr in range(2):
        for tc in range(2):
            for u in range(2):
                r = pack(tr, tc, u, False)
                a(f"buffer_store_dwordx4 {r}, v{(8, 15)[tc]}, {srd(sWS)}, s98 offen offset:{tr*1280 + u*640} sc1")
    a("s_branch L_g1done")
    a("L_aux:")
    a(f"s_lshr_b32 {t0}, s{sI}, 1"); a(f"s_cmp_eq_u32 {t0}, s{sHG}"); a(f"s_cselect_b32 {t0}, {WR}, 1")
    a(f"s_cmp_eq_u32 {t0}, 0"); a("s_cbranch_scc1 L_aux_go")
    for s in range(10): a("s_barrier")
    a("s_branch L_g1done")
    a("L_aux_go:")
    for ks in range(1, 4): a(f"v_xor_b32 v{2+ks}, {ks << 5}, v2")
    a("v_lshlrev_b32 v12, 4, v0"); a(f"v_add_u32 v13, {L_AUX}, v12")
    a("global_load_dwordx4 v[16:19], v12, s[72:73]"); a("global_load_dwordx4 v[20:23], v12, s[80:81]")
    a("s_mov_b64 exec, 0xffff")
    a("global_load_dwordx4 v[24:27], v12, s[72:73] offset:1024"); a("global_load_dwordx4 v[28:31], v12, s[80:81] offset:1024")
    a("s_waitcnt vmcnt(0)")
    a("ds_write_b128 v13, v[24:27] offset:1024"); a("ds_write_b128 v13, v[28:31] offset:2304")
    a("s_mov_b64 exec, -1")
    a("ds_write_b128 v13, v[16:19]"); a("ds_write_b128 v13, v[20:23] offset:1280")
    a("v_and_b32 v12, 1, v0"); a("v_mul_u32_u24 v12, 1280, v12"); a("v_lshl_add_u32 v12, v11, 4, v12"); a(f"v_add_u32 v6, {L_AUX}, v12")
    for k in range(64): a(f"v_mov_b32 v{64+k}, 0")
    a(f"s_mov_b32 s{sCNT}, 0")
    a("L_aux_loop:")
    next_stage(t0)
    a(f"s_lshl_b32 {t0}, {t0}, 7"); a(f"v_add_u32 v7, {t0}, v6")
    a(f"s_add_u32 {t3}, s{sCNT}, 3"); a(f"s_and_b32 {t3}, {t3}, 3"); a(f"s_lshl_b32 {t3}, {t3}, 14")
    for ks in range(4): a(f"v_add_u32 v{12+ks}, {t3}, v{2+ks}")
    a("s_waitcnt lgkmcnt(0)"); a("s_barrier")
    def auxreads(ks):
        b = ks & 1
        a(f"ds_read_b128 v[{16+b*20}:{19+b*20}], v7 offset:{ks*32}")
        for tr in range(4): a(f"ds_read_b128 v[{20+b*20+tr*4}:{23+b*20+tr*4}], v{12+ks} offset:{tr*4096}")
    auxreads(0)
    for ks in range(4):
        b = ks & 1
        if ks < 3: auxreads(ks+1); a("s_waitcnt lgkmcnt(5)")
        else: a("s_waitcnt lgkmcnt(0)")
        for tr in range(4):
            a(f"v_mfma_f32_32x32x16_bf16 v[{64+tr*16}:{79+tr*16}], v[{16+b*20}:{19+b*20}], v[{20+b*20+tr*4}:{23+b*20+tr*4}], v[{64+tr*16}:{79+tr*16}]")
    a(f"s_add_u32 s{sCNT}, s{sCNT}, 1"); a(f"s_cmp_lt_u32 s{sCNT}, 10"); a("s_cbranch_scc1 L_aux_loop")
    a("v_cmp_lt_u32 vcc, 31, v0")
    a("v_cndmask_b32 v16, v64, v96, vcc"); a("v_cndmask_b32 v17, v80, v112, vcc")
    a("v_cndmask_b32 v18, v65, v97, vcc"); a("v_cndmask_b32 v19, v81, v113, vcc")
    a("v_lshl_add_u32 v20, v11, 6, v10"); a(f"s_lshl_b32 {t0}, s{sRB}, 7"); a(f"v_add_u32 v20, {t0}, v20")
    for k in range(2):
        a(f"v_cvt_pk_bf16_f32 v21, 0, v{16+k}")
        a("v_ashrrev_i32 v22, 31, v21"); a("v_or_b32 v22, 0x80000000, v22"); a("v_xor_b32 v21, v21, v22"); a("v_and_b32 v21, 0xffff0000, v21")
        a(f"v_sub_u32 v22, {0x8000 + 2047 - 32*k}, v20"); a(f"v_or_b32 v{24+k}, v21, v22")
    a("v_max_u32 v26, v24, v25"); a("v_min_u32 v27, v24, v25")
    def wmax(dst, src):
        a(f"v_max_u32_dpp {dst}, {src}, {src} row_ror:8 row_mask:0xf bank_mask:0xf")
        for sh in (4, 2, 1): a(f"v_max_u32_dpp {dst}, {dst}, {dst} row_ror:{sh} row_mask:0xf bank_mask:0xf")
        a(f"v_readlane_b32 {t0}, {dst}, 0"); a(f"v_readlane_b32 {t1}, {dst}, 16"); a(f"v_readlane_b32 {t2}, {dst}, 32"); a(f"v_readlane_b32 {t3}, {dst}, 48")
        a(f"s_max_u32 {t0}, {t0}, {t1}"); a(f"s_max_u32 {t2}, {t2}, {t3}"); a(f"s_max_u32 {t0}, {t0}, {t2}")
    wmax("v28", "v26"); a(f"s_mov_b32 {t4}, {t0}")
    a(f"v_cmp_eq_u32 vcc, {t4}, v26"); a("v_cndmask_b32 v26, v26, v27, vcc")
    wmax("v28", "v26")
    a(f"v_mov_b32 v28, {t4}"); a(f"v_mov_b32 v29, {t0}"); a("v_mov_b32 v30, 0")
    a(f"s_lshl_b32 {t1}, s{sRB}, 7"); a(f"s_add_u32 {t1}, {t1}, {FL_C}")
    a("s_mov_b64 exec, 1")
    a(f"buffer_store_dwordx2 v[28:29], v30, {srd(sWS)}, {t1} offen sc1")
    a("s_mov_b64 exec, -1")
    for k in range(2):
        a(f"v_mul_f32 v{18+k}, {f2u(-math.log2(math.e))}, v{18+k}"); a(f"v_exp_f32 v{18+k}, v{18+k}")
        a(f"v_add_f32 v{18+k}, 1.0, v{18+k}"); a(f"v_rcp_f32 v{18+k}, v{18+k}")
    a("v_lshlrev_b32 v20, 2, v20"); a(f"s_mov_b32 {t1}, {WS_G}")
    a(f"buffer_store_dword v18, v20, {srd(sWS)}, {t1} offen sc1")
    a(f"buffer_store_dword v19, v20, {srd(sWS)}, {t1} offen offset:128 sc1")
    a("L_g1done:")
    a(f"v_mov_b32 v2, {L_CNT}"); a("v_mov_b32 v3, 1")
    a("s_waitcnt vmcnt(0)")
    ST(1)
    a("s_mov_b64 exec, 1"); a("ds_add_rtn_u32 v4, v2, v3"); a("s_waitcnt lgkmcnt(0)")
    a(f"v_readfirstlane_b32 {t0}, v4"); a("s_mov_b64 exec, -1")
    a(f"s_cmp_lg_u32 {t0}, 3"); a("s_cbranch_scc1 L_att")
    a(f"s_lshl_b32 {t0}, s2, 7"); a(f"s_add_u32 {t0}, {t0}, {FL_Q}"); a("v_mov_b32 v2, 0")
    a("s_mov_b64 exec, 1")
    a(f"buffer_store_dword v3, v2, {srd(sWS)}, {t0} offen sc1")
    a("s_mov_b32 exec_lo, -1"); a("s_mov_b32 exec_hi, 0")
    a("v_and_b32 v4, 3, v0"); a(f"s_lshl_b32 {t0}, s{sQB}, 1"); a(f"s_sub_u32 {t0}, {t0}, 2"); a(f"v_add_u32 v4, {t0}, v4")
    a("v_max_i32 v4, 0, v4"); a("v_lshrrev_b32 v5, 2, v4"); a("v_and_b32 v4, 3, v4"); a("v_and_b32 v6, 28, v0"); a("v_add_u32 v4, v4, v6")
    a("v_lshl_add_u32 v4, v4, 3, v5"); a(f"s_lshl_b32 {t0}, s{sHG}, 2"); a(f"v_add_u32 v4, {t0}, v4"); a("v_lshlrev_b32 v4, 7, v4")
    a(f"s_mov_b32 {t0}, {FL_Q}")
    a("s_waitcnt vmcnt(0)")
    poll(f"buffer_load_dword v5, v4, {srd(sWS)}, {t0} offen sc1", "v_cmp_ne_u32 vcc, 1, v5")
    a("s_mov_b64 exec, -1")

    a("L_att:")
    vQ0, vQ1 = 2, 6
    vKA, vKX, vVA = 8, 9, 10
    K0 = lambda b: 16 + b*8; K1 = lambda b: 20 + b*8
    VF = lambda b: 32 + b*8
    SB = lambda b: 48 + b*16
    vP = 80; vO = 96; vMD = 112; vMF = 128
    a("v_and_b32 v11, 31, v0"); a("v_lshrrev_b32 v12, 5, v0")
    a("v_lshlrev_b32 v13, 2, v12"); a("v_sub_u32 v13, v11, v13"); a("v_mov_b32 v14, 0xff800000"); a("v_mov_b32 v15, 0")
    for r in range(16):
        a(f"v_cmp_gt_i32 vcc, {(r&3) + 8*(r>>2)}, v13")
        a(f"v_cndmask_b32 v{vMD+r}, v15, v14, vcc"); a(f"v_cndmask_b32 v{vMF+r}, v14, v15, vcc")
    for b in range(2):
        for k in range(2): a(f"v_mov_b32 v{K1(b)+k}, 0x3f803f80")
        for k in range(8): a(f"v_mov_b32 v{VF(b)+k}, 0x3f803f80")
    a(f"v_mov_b32 v{vQ1}, 0"); a(f"v_mov_b32 v{vQ1+1}, 0")
    a(f"s_lshl_b32 {t0}, s{sWAVE}, 9"); a(f"s_add_u32 {t0}, {t0}, {L_K}")
    a(f"v_lshlrev_b32 v13, 4, v11"); a(f"v_lshl_add_u32 v{vKA}, v12, 13, v13"); a(f"v_add_u32 v{vKA}, {t0}, v{vKA}")
    a(f"s_lshl_b32 {t1}, s{sPAR}, 3"); a(f"s_add_u32 {t0}, {t0}, {t1}"); a(f"s_add_u32 {t0}, {t0}, 16384"); a(f"v_add_u32 v{vKX}, {t0}, v13")
    a(f"s_mul_i32 {t0}, s{sWAVE}, 1280"); a(f"s_add_u32 {t0}, {t0}, {L_V}"); a("v_mul_u32_u24 v14, 320, v12"); a(f"v_add3_u32 v{vVA}, v13, v14, {t0}")
    a(f"s_mul_i32 {t0}, s{sHEAD}, 5"); a(f"s_add_u32 {t0}, {t0}, s{sPAR}"); a(f"s_lshl_b32 {t0}, {t0}, 14")
    a(f"s_mul_i32 {t1}, s{sPAR}, {3*32768}"); a(f"s_sub_u32 {t1}, {2*32768}, {t1}"); a(f"s_add_u32 {t1}, {t1}, {t0}")
    a(f"s_lshl_b32 {t2}, s{sQB}, 12")
    a("v_lshl_add_u32 v14, v12, 15, v13")
    a("v_lshlrev_b32 v15, 4, v0")
    a(f"s_lshl_b32 {t3}, s{sWAVE}, 9"); a(f"s_add_u32 {t3}, {t3}, {t2}")
    a(f"s_add_u32 s98, {t3}, {t0}")
    a(f"s_add_u32 s99, {t3}, {t1}"); a(f"s_lshl_b32 {t4}, s{sPAR}, 3"); a(f"s_add_u32 s99, s99, {t4}")
    a(f"s_lshl_b32 {t3}, s{sWAVE}, 10"); a(f"s_add_u32 {t2}, {t2}, {t3}"); a(f"s_add_u32 {t2}, {t2}, {WS_KC - 4096}")
    a(f"s_add_u32 {t0}, {t0}, {t2}"); a(f"s_add_u32 {t1}, {t1}, {t2}")
    a(f"s_mul_i32 {t2}, s{sHEAD}, 81920"); a(f"s_mul_i32 {t4}, s{sQB}, 10240"); a(f"s_add_u32 {t2}, {t2}, {t4}")
    a(f"s_add_u32 {t2}, {t2}, {t3}"); a(f"s_add_u32 {t2}, {t2}, {WS_VT - 10240}")
    a("s_barrier")
    ST(4)
    a(f"buffer_load_dwordx4 v[{vQ0}:{vQ0+3}], v14, {srd(sWS)}, s98 offen sc1")
    a("s_mov_b32 exec_lo, -1"); a("s_mov_b32 exec_hi, 0")
    a(f"buffer_load_dwordx2 v[{vQ1}:{vQ1+1}], v14, {srd(sWS)}, s99 offen sc1")
    a("s_mov_b64 exec, -1")
    a(f"s_lshr_b32 {t4}, s{sWAVE}, 2"); a(f"s_or_b32 {t4}, {t4}, s{sQB}"); a(f"s_cmp_eq_u32 {t4}, 0"); a("s_cbranch_scc1 L_att_nok")
    a(f"s_add_u32 m0, {t3}, {L_K}"); a(f"buffer_load_dwordx4 v15, {srd(sWS)}, {t0} offen sc1 lds")
    a(f"s_add_u32 {t0}, {t0}, 32768")
    a(f"s_add_u32 m0, {t3}, {L_K + 8192}"); a(f"buffer_load_dwordx4 v15, {srd(sWS)}, {t0} offen sc1 lds")
    a(f"s_add_u32 m0, {t3}, {L_K + 16384}"); a(f"buffer_load_dwordx4 v15, {srd(sWS)}, {t1} offen sc1 lds")
    a("L_att_nok:")
    a(f"s_cmp_eq_u32 s{sQB}, 0"); a("s_cbranch_scc1 L_att_v1")
    a(f"s_add_u32 m0, {t3}, {L_V}"); a(f"buffer_load_dwordx4 v15, {srd(sWS)}, {t2} offen sc1 lds")
    a("L_att_v1:")
    a(f"s_add_u32 {t2}, {t2}, 8192")
    a(f"s_lshr_b32 {t4}, s{sWAVE}, 1"); a(f"s_or_b32 {t4}, {t4}, s{sQB}"); a(f"s_cmp_eq_u32 {t4}, 0"); a("s_cbranch_scc1 L_att_v2")
    a(f"s_add_u32 m0, {t3}, {L_V + 8192}"); a(f"buffer_load_dwordx4 v15, {srd(sWS)}, {t2} offen sc1 lds")
    a("L_att_v2:")
    a(f"s_add_u32 {t2}, {t2}, 8192")
    a(f"s_cmp_ge_u32 s{sWAVE}, 4"); a("s_cbranch_scc1 L_att_v3")
    a(f"s_add_u32 m0, {t3}, {L_V + 16384}"); a(f"buffer_load_dwordx4 v15, {srd(sWS)}, {t2} offen sc1 lds")
    a("L_att_v3:")
    a(f"s_sub_u32 s93, 8, s{sWAVE}"); a(f"s_cmp_eq_u32 s{sQB}, 0"); a("s_cselect_b32 s93, s93, 0")
    a(f"s_mov_b32 s{sPASS}, 0")
    a("s_waitcnt vmcnt(0)"); a("s_barrier")
    ST(5)
    def readK(t, b):
        a(f"ds_read_b128 v[{K0(b)}:{K0(b)+3}], v{vKA} offset:{t*512}")
        a("s_mov_b32 exec_hi, 0")
        a(f"ds_read_b64 v[{K1(b)}:{K1(b)+1}], v{vKX} offset:{t*512}")
    def readV(t, b):
        a(f"s_mov_b64 exec, s[{sVM}:{sVM+1}]")
        for u in range(2): a(f"ds_read_b128 v[{VF(b)+4*u}:{VF(b)+4*u+3}], v{vVA} offset:{t*1280 + u*640}")
    S = lambda b: f"v[{SB(b)}:{SB(b)+15}]"
    def qk(t, kb, sb, part=None):
        c = f"v[{vMD}:{vMD+15}]" if t == 8 else (f"v[{vMF}:{vMF+15}]" if t == 0 else "0")
        if part in (None, 0): a(f"v_mfma_f32_32x32x16_bf16 {S(sb)}, v[{K0(kb)}:{K0(kb)+3}], v[{vQ0}:{vQ0+3}], {c}")
        if part in (None, 1): a(f"v_mfma_f32_32x32x8_bf16 {S(sb)}, v[{K1(kb)}:{K1(kb)+1}], v[{vQ1}:{vQ1+1}], {S(sb)}")
    def tilemax(dst, sb, first):
        s = SB(sb)
        a(f"v_max3_f32 {dst}, v{s}, v{s+1}, {f'v{s+2}' if first else dst}")
        k = 3 if first else 2
        while k < 16:
            if k + 1 < 16: a(f"v_max3_f32 {dst}, v{s+k}, v{s+k+1}, {dst}"); k += 2
            else: a(f"v_max_f32 {dst}, v{s+k}, {dst}"); k += 1
    def halves_max(r, tmp):
        a(f"v_mov_b32 {tmp}, {r}"); a(f"v_permlane32_swap_b32 {r}, {tmp}"); a(f"v_max_f32 {r}, {r}, {tmp}")
    readK(8, 0); a("s_mov_b64 exec, -1"); a("s_waitcnt lgkmcnt(0)")
    qk(8, 0, 1)
    tilemax("v11", 1, True); halves_max("v11", "v12")
    a("s_mov_b32 exec_lo, 0")
    a(f"v_cvt_pk_bf16_f32 v{vQ1}, -v11, 0")
    a("s_mov_b64 exec, -1")
    a("L_att_pass:")
    readK(8, 0); a("s_mov_b64 exec, -1")
    readK(7, 1); readV(8, 0); a("s_mov_b64 exec, -1")
    a("s_waitcnt lgkmcnt(4)")
    qk(8, 0, 0)
    for t in range(8, -1, -1):
        b = t & 1
        nb = b ^ 1
        n = 0
        if t >= 2: readK(t-2, b); n += 2
        if t >= 1: readV(t-1, nb); n += 2
        if n: a("s_mov_b64 exec, -1")
        a(f"s_waitcnt lgkmcnt({n})")
        s = SB(b)
        def ex(k): a(f"v_exp_f32 v{s+k}, v{s+k}")
        def cv(k): a(f"v_cvt_pk_bf16_f32 v{vP+k}, v{s+2*k}, v{s+2*k+1}")
        if t >= 1: qk(t-1, nb, nb, 0)
        for k in range(4): ex(k)
        if t >= 1: qk(t-1, nb, nb, 1)
        for k in range(4, 8): ex(k)
        for k in range(4): cv(k)
        ex(8); ex(9)
        a(f"v_mfma_f32_32x32x16_bf16 v[{vO}:{vO+15}], v[{VF(b)}:{VF(b)+3}], v[{vP}:{vP+3}], {'0' if t == 8 else f'v[{vO}:{vO+15}]'}")
        for k in range(10, 16): ex(k)
        for k in range(4, 8): cv(k)
        if t >= 1: a(f"s_cmp_eq_u32 s93, {t}")
        a(f"v_mfma_f32_32x32x16_bf16 v[{vO}:{vO+15}], v[{VF(b)+4}:{VF(b)+7}], v[{vP+4}:{vP+7}], v[{vO}:{vO+15}]")
        if t >= 1: a("s_cbranch_scc1 L_att_done")
    a("L_att_done:")
    a("s_waitcnt lgkmcnt(0)")
    thr = 2.0**-100 if o["force_fallback"] else 2.0**40
    a(f"v_mov_b32 v12, {f2u(thr)}")
    a(f"s_cmp_lg_u32 s{sPASS}, 0"); a("s_cbranch_scc1 L_att_out")
    a(f"v_cmp_nle_f32 s[96:97], v{vO+12}, v12"); a(f"v_cmp_gt_f32 vcc, {f2u(2.0**-40)}, v{vO+12}")
    a("s_or_b64 vcc, vcc, s[96:97]"); a("s_cbranch_vccz L_att_out")
    a(f"s_mov_b32 s{sPASS}, 1")
    a("s_mov_b32 exec_lo, 0"); a(f"v_mov_b32 v{vQ1}, 0"); a(f"v_mov_b32 v{vQ1+1}, 0"); a("s_mov_b64 exec, -1")
    for t in range(8, -1, -1):
        readK(t, 0); a("s_mov_b64 exec, -1"); a("s_waitcnt lgkmcnt(0)")
        qk(t, 0, 0); tilemax("v11", 0, t == 8)
        if t >= 1: a(f"s_cmp_eq_u32 s93, {t}"); a("s_cbranch_scc1 L_att_fb2")
    a("L_att_fb2:")
    halves_max("v11", "v12")
    a("v_and_b32 v12, 0xffff0000, v11"); a("v_sub_f32 v13, v11, v12"); a("v_and_b32 v14, 0xffff0000, v13"); a("v_sub_f32 v13, v13, v14")
    a("s_mov_b32 exec_lo, 0")
    a(f"v_cvt_pk_bf16_f32 v{vQ1}, -v12, -v14"); a(f"v_cvt_pk_bf16_f32 v{vQ1+1}, -v13, 0")
    a("s_mov_b64 exec, -1")
    a("s_branch L_att_pass")
    a("L_att_out:")
    ST(6)
    a(f"v_rcp_f32 v12, v{vO+12}")
    a("v_and_b32 v11, 31, v0"); a("v_lshrrev_b32 v13, 5, v0"); a("v_lshlrev_b32 v14, 4, v11"); a("v_lshl_add_u32 v14, v13, 15, v14"); a("v_lshlrev_b32 v15, 3, v11")
    for k in range(12): a(f"v_mul_f32 v{vO+k}, v12, v{vO+k}")
    for k in range(6): a(f"v_cvt_pk_bf16_f32 v{16+k}, v{vO+2*k}, v{vO+2*k+1}")
    a(f"s_lshl_b32 {t2}, s{sQB}, 3"); a(f"s_add_u32 {t2}, {t2}, s{sWAVE}")
    a(f"s_lshl_b32 {t0}, s{sHEAD}, 16"); a(f"s_lshl_b32 {t1}, {t2}, 9"); a(f"s_add_u32 {t0}, {t0}, {t1}"); a(f"s_add_u32 {t0}, {t0}, {WS_OM}")
    a(f"s_lshl_b32 {t1}, s{sHEAD}, 14"); a(f"s_lshl_b32 {t2}, {t2}, 8"); a(f"s_add_u32 {t1}, {t1}, {t2}"); a(f"s_add_u32 {t1}, {t1}, {WS_OX}")
    a(f"buffer_store_dwordx4 v[16:19], v14, {srd(sWS)}, {t0} offen sc1")
    a("s_mov_b32 exec_lo, -1"); a("s_mov_b32 exec_hi, 0")
    a(f"buffer_store_dwordx2 v[20:21], v15, {srd(sWS)}, {t1} offen sc1")
    a("s_mov_b64 exec, -1")
    a("s_waitcnt vmcnt(0)"); a("s_barrier")
    ST(7)

    RT, KH = "s3", "s93"
    a(f"s_and_b32 {RT}, s{sWAVE}, 3"); a(f"s_lshr_b32 {KH}, s{sWAVE}, 2")
    a(f"s_cmp_lg_u32 s{sWAVE}, 0"); a("s_cbranch_scc1 L_o_nosig")
    a(f"s_lshl_b32 {t0}, s2, 7"); a(f"s_add_u32 {t0}, {t0}, {FL_O}"); a("v_mov_b32 v2, 0"); a("v_mov_b32 v3, 1")
    a("s_mov_b64 exec, 1")
    a(f"buffer_store_dword v3, v2, {srd(sWS)}, {t0} offen sc1")
    a("s_mov_b64 exec, -1")
    a("L_o_nosig:")
    load_top2()
    a(f"s_lshl_b32 {t0}, s{sTQ}, 1"); a(f"s_add_u32 {t0}, {t0}, s{sHG}"); a(f"s_lshl_b32 {t0}, {t0}, 8")
    a(f"s_lshl_b32 {t1}, s{sI}, 6"); a(f"s_add_u32 {t0}, {t0}, {t1}"); a(f"s_lshl_b32 {t1}, {RT}, 4"); a(f"s_add_u32 s98, {t0}, {t1}")
    a("v_and_b32 v10, 15, v0"); a("v_lshrrev_b32 v11, 4, v0")
    a("v_add_u32 v12, s98, v10")
    a("v_lshlrev_b32 v2, 4, v12"); a("v_lshl_add_u32 v2, v11, 15, v2")
    a("v_lshlrev_b32 v3, 3, v12"); a("v_lshl_add_u32 v3, v11, 14, v3")
    a("v_lshlrev_b32 v4, 2, v12")
    a("v_mul_u32_u24 v5, 1280, v12"); a("v_lshl_add_u32 v6, v11, 3, v5")
    a(f"s_mul_i32 s99, s{sJ}, 160"); a(f"s_mul_i32 {t0}, {KH}, 96"); a(f"s_add_u32 s99, s99, {t0}")
    for k in range(3): a(f"buffer_load_dwordx2 v[{14+2*k}:{15+2*k}], v6, {srd(sX)}, s99 offen offset:{32*k}")
    a("v_bfe_u32 v13, v0, 2, 2"); a("v_bfe_u32 v20, v0, 4, 1"); a("v_lshl_add_u32 v20, v20, 2, v13"); a("v_lshrrev_b32 v21, 5, v0")
    a("v_mad_u32_u24 v20, v21, 20, v20"); a("v_mul_u32_u24 v20, 160, v20"); a("v_and_b32 v21, 3, v0"); a("v_lshlrev_b32 v21, 3, v21")
    a(f"s_mul_i32 {t0}, {KH}, {320*160}"); a(f"s_add_u32 {t0}, {t0}, {L_WO}"); a(f"v_add3_u32 v7, v20, v21, {t0}")
    a("v_mad_u32_u24 v20, v11, 20, v13"); a("v_mul_u32_u24 v20, 160, v20"); a(f"v_add3_u32 v8, v20, v21, {t0}")
    BF = lambda b, ct: 100 + b*20 + ct*4
    NB = 4
    def readB(s):
        b = s % NB
        for ct in range(5):
            for jj in range(2):
                r = BF(b, ct) + 2*jj
                if s < 8: a(f"ds_read_b64_tr_b16 v[{r}:{r+1}], v7 offset:{(40*s + 8*jj)*160 + 32*ct}")
                else: a(f"ds_read_b64_tr_b16 v[{r}:{r+1}], v8 offset:{(160*(s-8) + 80*jj + 16)*160 + 32*ct}")
    for s in range(NB-1):
        readB(s); a("s_waitcnt lgkmcnt(0)")
    a(f"s_cmp_lg_u32 s{sWAVE}, 4"); a("s_cbranch_scc1 L_ffb_skip")
    a(f"s_cmp_ge_u32 s{sIDX}, 30"); a("s_cbranch_scc1 L_ffb_skip")
    a(f"s_sub_u32 {t0}, s{sIDX}, s{sKS}"); a(f"s_lshl_b32 {t0}, {t0}, 3"); a(f"s_add_u32 {t0}, {t0}, s{sXCD}"); a(f"s_lshl_b32 {t0}, {t0}, 7"); a(f"s_add_u32 {t0}, {t0}, {FL_A}")
    a("v_lshrrev_b32 v20, 2, v0"); a("v_min_u32 v20, 9, v20"); a("v_lshlrev_b32 v20, 10, v20"); a("v_and_b32 v21, 3, v0"); a("v_lshl_add_u32 v20, v21, 2, v20")
    poll(f"buffer_load_dword v21, v20, {srd(sWS)}, {t0} offen sc1", "v_cmp_ne_u32 vcc, 1, v21")
    a("v_lshlrev_b32 v20, 4, v0"); a(f"s_mul_i32 {t0}, s{sFG}, 10240"); a(f"s_add_u32 {t0}, {t0}, {WS_FA}")
    for k in range(10):
        a(f"buffer_load_dwordx4 v[{40+4*k}:{43+4*k}], v20, {srd(sWS)}, {t0} offen offset:{(k&3)*1024} sc1")
        if k & 3 == 3: a(f"s_add_u32 {t0}, {t0}, 4096")
    for k in range(1, 10):
        a(f"s_waitcnt vmcnt({9-k})")
        for c in range(4): a(f"v_add_f32 v{40+c}, v{40+c}, v{40+4*k+c}")
    for c in range(4):
        a(f"v_cvt_pk_bf16_f32 v{40+c}, 0, v{40+c}"); a(f"v_mov_b32 v{44+c}, v{40+c}")
    for c in range(4): a(f"v_permlane32_swap_b32 v{40+c}, v{44+c}")
    for c in range(4):
        a(f"v_mul_f32 v48, {f2u(-math.log2(math.e))}, v{40+c}"); a("v_exp_f32 v48, v48"); a("v_add_f32 v48, 1.0, v48"); a("v_rcp_f32 v48, v48")
        a(f"v_mul_f32 v{40+c}, v{40+c}, v48"); a(f"v_cvt_pk_bf16_f32 v{40+c}, 0, v{40+c}"); a(f"v_mul_f32 v{40+c}, v{40+c}, v{44+c}")
    a("v_cvt_pk_bf16_f32 v40, v40, v41"); a("v_cvt_pk_bf16_f32 v41, v42, v43")
    a("v_and_b32 v20, 31, v0"); a("v_lshlrev_b32 v20, 3, v20"); a(f"v_add_u32 v20, {L_MISC}, v20")
    a("ds_write_b64 v20, v[40:41]")
    a("v_and_b32 v20, 1, v0"); a("v_lshlrev_b32 v20, 7, v20"); a("v_and_b32 v21, 48, v0"); a("v_add_u32 v22, v20, v21")
    a("s_waitcnt lgkmcnt(0)")
    a(f"ds_read_b128 v[44:47], v22 offset:{L_MISC}"); a(f"ds_read_b128 v[48:51], v22 offset:{L_MISC+64}")
    a("v_mul_u32_u24 v20, 480, v20"); a("v_add_u32 v20, v20, v21")
    a(f"s_mul_i32 {t0}, s{sFG}, 2560"); a(f"s_lshl_b32 {t1}, s{sKS}, 8"); a(f"s_add_u32 {t0}, {t0}, {t1}"); a(f"s_add_u32 {t0}, {t0}, {WS_FB}")
    a("s_waitcnt lgkmcnt(0)")
    for ct in range(4): a(f"v_mfma_f32_16x16x32_bf16 v[{52+4*ct}:{55+4*ct}], v[{224+8*ct}:{227+8*ct}], v[44:47], 0")
    for ct in range(4): a(f"v_mfma_f32_16x16x32_bf16 v[{52+4*ct}:{55+4*ct}], v[{228+8*ct}:{231+8*ct}], v[48:51], v[{52+4*ct}:{55+4*ct}]")
    a("s_mov_b32 exec_lo, 0x00030003"); a("s_mov_b32 exec_hi, 0x00030003")
    for ct in range(4): a(f"buffer_store_dwordx4 v[{52+4*ct}:{55+4*ct}], v20, {srd(sWS)}, {t0} offen offset:{64*ct} sc1")
    a("s_mov_b64 exec, 1")
    a(f"s_lshl_b32 {t0}, s2, 7"); a(f"s_add_u32 {t0}, {t0}, {FL_B}"); a("v_mov_b32 v20, 0"); a("v_mov_b32 v21, 1")
    a("s_waitcnt vmcnt(0)")
    a(f"buffer_store_dword v21, v20, {srd(sWS)}, {t0} offen sc1")
    a("s_mov_b64 exec, -1")
    a("L_ffb_skip:")
    a(f"s_cmp_lg_u32 s{sWAVE}, 0"); a("s_cbranch_scc1 L_o_nopoll")
    a("s_mov_b32 exec_lo, -1"); a("s_mov_b32 exec_hi, 0")
    a("v_lshlrev_b32 v20, 4, v10"); a("v_lshl_add_u32 v20, v11, 2, v20")
    a(f"s_lshl_b32 {t0}, s{sHG}, 3"); a(f"s_add_u32 {t0}, {t0}, s{sTQ}"); a(f"v_add_u32 v20, {t0}, v20"); a("v_lshlrev_b32 v20, 7, v20")
    a(f"s_mov_b32 {t0}, {FL_O}")
    poll(f"buffer_load_dword v21, v20, {srd(sWS)}, {t0} offen sc1", "v_cmp_ne_u32 vcc, 1, v21")
    a("s_mov_b64 exec, -1")
    a("L_o_nopoll:")
    a(f"s_lshl_b32 {t0}, {KH}, 20"); a(f"s_add_u32 {t0}, {t0}, {WS_OM}")
    a(f"s_lshl_b32 {t1}, {KH}, 18"); a(f"s_add_u32 {t1}, {t1}, {WS_OX}")
    a(f"s_mov_b32 {t2}, {WS_G}")
    a("s_waitcnt vmcnt(0)")
    a("s_barrier")
    ST(8)
    AF = lambda s: 40 + 4*s
    for s in range(8):
        a(f"buffer_load_dwordx4 v[{AF(s)}:{AF(s)+3}], v2, {srd(sWS)}, {t0} offen sc1")
        if s < 7: a(f"s_add_u32 {t0}, {t0}, {1 << 17}")
    for s in range(8, 10):
        for jj in range(2):
            a(f"buffer_load_dwordx2 v[{AF(s)+2*jj}:{AF(s)+2*jj+1}], v3, {srd(sWS)}, {t1} offen sc1")
            a(f"s_add_u32 {t1}, {t1}, {1 << 16}")
    a(f"buffer_load_dword v9, v4, {srd(sWS)}, {t2} offen sc1")
    AC = lambda ct: f"v[{80+4*ct}:{83+4*ct}]"
    for s in range(10):
        left = 12 - s if s < 8 else (3 if s == 8 else 1)
        if s + NB - 1 < 10:
            a("s_waitcnt lgkmcnt(5)"); readB(s + NB - 1); a(f"s_waitcnt vmcnt({left})")
        else: a(f"s_waitcnt vmcnt({left}) lgkmcnt(0)")
        for ct in range(5):
            r = BF(s % NB, ct)
            a(f"v_mfma_f32_16x16x32_bf16 {AC(ct)}, v[{r}:{r+3}], v[{AF(s)}:{AF(s)+3}], {AC(ct) if s else '0'}")
    ST(9)
    a("v_lshlrev_b32 v20, 4, v0"); a(f"s_mul_i32 {t0}, {RT}, 5120"); a(f"s_add_u32 {t0}, {t0}, {L_RED}"); a(f"v_add_u32 v20, {t0}, v20")
    a(f"s_cmp_eq_u32 {KH}, 0"); a("s_cbranch_scc1 L_x0")
    for ct in range(3): a(f"ds_write_b128 v20, {AC(ct)} offset:{ct*1024}")
    for c in range(8): a(f"v_mov_b32 v{80+c}, v{92+c}")
    a("v_add_u32 v20, 3072, v20")
    a("s_branch L_x1")
    a("L_x0:")
    for ct in range(3, 5): a(f"ds_write_b128 v20, {AC(ct)} offset:{ct*1024}")
    a("L_x1:")
    a("s_waitcnt lgkmcnt(0)"); a("s_barrier")
    for k in range(3): a(f"ds_read_b128 v[{40+4*k}:{43+4*k}], v20 offset:{k*1024}")
    for k in range(6):
        a(f"v_lshlrev_b32 v{60+2*k}, 16, v{14+k}"); a(f"v_and_b32 v{61+2*k}, 0xffff0000, v{14+k}")
    for tk in range(2):
        sk = (sK0, sK1)[tk]; skip = lab("ysk")
        a(f"s_not_b32 {t0}, s{sk}"); a(f"s_and_b32 {t0}, {t0}, 2047"); a(f"s_sub_u32 {t0}, {t0}, s98"); a(f"s_cmp_ge_u32 {t0}, 16"); a(f"s_cbranch_scc1 {skip}")
        a(f"s_lshr_b32 {t1}, s99, 7"); a(f"s_add_u32 {t2}, s99, 95"); a(f"s_lshr_b32 {t2}, {t2}, 7"); a(f"s_min_u32 {t2}, {t2}, 9")
        a("v_and_b32 v21, 31, v0"); a("v_min_u32 v21, 23, v21"); a("v_mul_u32_u24 v22, 86, v21"); a("v_lshrrev_b32 v22, 8, v22")
        a("v_mul_u32_u24 v23, 3, v22"); a("v_sub_u32 v23, v21, v23"); a("v_mul_u32_u24 v23, 10, v23")
        a(f"v_mov_b32 v24, {t1}"); a(f"v_mov_b32 v25, {t2}"); a("v_cmp_lt_u32 vcc, 31, v0"); a("v_cndmask_b32 v24, v24, v25, vcc")
        a("v_add_u32 v23, v23, v24"); a("v_lshl_add_u32 v23, v23, 3, v22"); a("v_lshlrev_b32 v23, 7, v23")
        a(f"s_mov_b32 {t1}, {FL_B}")
        poll(f"buffer_load_dword v24, v23, {srd(sWS)}, {t1} offen sc1", "v_cmp_ne_u32 vcc, 1, v24")
        a("v_mul_u32_u24 v21, 2560, v10"); a("v_lshl_add_u32 v21, v11, 4, v21")
        a(f"s_lshl_b32 {t1}, s99, 1"); a(f"s_add_u32 {t1}, {t1}, {WS_FB + tk*61440}"); a(f"s_add_u32 {t2}, {t1}, {16*2560}")
        for c in range(12): a(f"v_mov_b32 v{112+c}, 0")
        for k in range(3): a(f"buffer_load_dwordx4 v[{100+4*k}:{103+4*k}], v21, {srd(sWS)}, {t1} offen offset:{64*k} sc1")
        a("s_mov_b32 exec_lo, 0x00ff00ff"); a("s_mov_b32 exec_hi, 0x00ff00ff")
        for k in range(3): a(f"buffer_load_dwordx4 v[{112+4*k}:{115+4*k}], v21, {srd(sWS)}, {t2} offen offset:{64*k} sc1")
        a("s_mov_b64 exec, -1")
        a(f"s_and_b32 {t1}, s{sk}, 0xffff0000"); a(f"s_ashr_i32 {t2}, {t1}, 31"); a(f"s_not_b32 {t2}, {t2}"); a(f"s_or_b32 {t2}, {t2}, 0x80000000")
        a(f"s_xor_b32 {t1}, {t1}, {t2}"); a(f"s_and_b32 {t1}, {t1}, 0xffff0000")
        a(f"v_mov_b32 v22, {f2u(-math.log2(math.e))}"); a(f"v_mul_f32 v22, {t1}, v22"); a("v_exp_f32 v22, v22"); a("v_add_f32 v22, 1.0, v22"); a("v_rcp_f32 v22, v22")
        a(f"v_cmp_eq_u32 vcc, {t0}, v10"); a("v_cndmask_b32 v22, 0, v22, vcc")
        a("s_waitcnt vmcnt(0)")
        for c in range(12): a(f"v_add_f32 v{100+c}, v{100+c}, v{112+c}")
        for sh in (8, 4, 2, 1):
            for c in range(12): a(f"v_add_f32_dpp v{100+c}, v{100+c}, v{100+c} row_ror:{sh} row_mask:0xf bank_mask:0xf")
        a("s_and_saveexec_b64 s[96:97], vcc")
        for c in range(12): a(f"v_fmac_f32 v{60+c}, v22, v{100+c}")
        a("s_mov_b64 exec, -1")
        a(f"{skip}:")
    a("s_waitcnt vmcnt(0) lgkmcnt(0)")
    for c in range(12):
        a(f"v_add_f32 v{80+c}, v{80+c}, v{40+c}"); a(f"v_sub_f32 v{80+c}, v{80+c}, v{60+c}"); a(f"v_fma_f32 v{80+c}, v9, v{80+c}, v{60+c}")
    for k in range(6): a(f"v_cvt_pk_bf16_f32 v{40+k}, v{80+2*k}, v{81+2*k}")
    a("v_bfe_u32 v21, v0, 4, 1"); a("v_lshl_add_u32 v21, v21, 5, v5"); a("v_lshrrev_b32 v22, 5, v0"); a("v_lshl_add_u32 v21, v22, 4, v21")
    a("v_permlane16_swap_b32 v40, v42"); a("v_permlane16_swap_b32 v41, v43")
    a(f"buffer_store_dwordx4 v[40:43], v21, {srd(sOUT)}, s99 offen")
    a(f"s_cmp_lg_u32 {KH}, 0"); a("s_cbranch_scc1 L_fin")
    a(f"buffer_store_dwordx2 v[44:45], v6, {srd(sOUT)}, s99 offen offset:64")
    a("L_fin:")
    if stamp:
        a("s_waitcnt vmcnt(0)")
        ST(10)
        a("s_waitcnt lgkmcnt(0)")
        a(f"s_lshl_b32 {t0}, s2, 3"); a(f"s_add_u32 {t0}, {t0}, s{sWAVE}"); a(f"s_lshl_b32 {t0}, {t0}, 6"); a(f"s_add_u32 {t0}, {t0}, {WS_STAMP}")
        a("v_mov_b32 v2, 0"); a("s_mov_b64 exec, 1")
        for k in range(12):
            a(f"v_mov_b32 v3, s{94 if k == 11 else sST+2*k}")
            a(f"buffer_store_dword v3, v2, {srd(sWS)}, {t0} offen offset:{4*k}")
    a("L_end:")
    a("s_endpgm")
    body, pads = a.finish()
    head = open(f"cdna_kernels/{NAME}.s.ref").read().split("; Override launch geometry")[0]
    txt = head + f"; @launch grid=(256,1,1) block=(512,1,1) lds={LDS_BYTES}\n"
    txt += f'.amdgcn_target "amdgcn-amd-amdhsa--gfx950"\n.text\n.globl {NAME}_kernel\n.p2align 8\n.type {NAME}_kernel,@function\n{NAME}_kernel:\n'
    txt += body + "L_code_end:\n"
    txt = txt.replace("CODE_BYTES", f"L_code_end-{NAME}_kernel-64")
    txt += f""".section .rodata,"a"
.p2align 6
.amdhsa_kernel {NAME}_kernel
  .amdhsa_next_free_vgpr 256
  .amdhsa_next_free_sgpr 102
  .amdhsa_accum_offset 256
  .amdhsa_group_segment_fixed_size 0
  .amdhsa_kernarg_size 96
  .amdhsa_user_sgpr_count 2
  .amdhsa_user_sgpr_kernarg_segment_ptr 1
  .amdhsa_system_sgpr_workgroup_id_x 1
.end_amdhsa_kernel
"""
    return txt

if __name__ == "__main__":
    out = sys.argv[1] if len(sys.argv) > 1 else f"cdna_kernels/{NAME}.s"
    open(out, "w").write(gen(stamp="--stamp" in sys.argv, opts=dict(force_fallback="--fb" in sys.argv)))
    print("wrote", out)
```

```python
import sys, math
sys.path.insert(0, "dev")
from asmlib import Asm

NAME = "gated_mix__sliding_block__moe_arch_mod__prompt"
WS_QC = 0x000000; WS_KC = 0x280000; WS_VT = 0x500000; WS_OM = 0x780000; WS_OX = 0x980000
WS_G = 0xA00000
WS_FA = 0xA10000
WS_FB = 0xA60000
WS_FLG = 0xA80000
FL_Q, FL_A, FL_O, FL_B, FL_C = [WS_FLG + k*0x8000 for k in range(5)]
WS_STAMP = 0xB00000
WS_SIZE = 0xC00000
L_X = 0; L_W = 68*1024; L_FFA = 132*1024; L_FFB = 148*1024; L_AUX = 156*1024; L_CNT = 159*1024
L_WO = 16*1024; L_K = 116*1024; L_V = 140*1024; L_MISC = 0; L_RED = L_K
LDS_BYTES = 160*1024
SPIN = 30000
QSCALE = math.log2(math.e) / math.sqrt(20.0)
def f2u(x):
    import struct; return struct.unpack("<I", struct.pack("<f", x))[0]

sX, sWQ, sWS, sWO, sOUT, sWG, sWU, sWD, sDBG = 4, 8, 12, 16, 20, 24, 28, 32, 36
def srd(n): return f"s[{n}:{n+3}]"
sWAVE, sXCD, sIDX, sHG, sTQ, sI, sJ, sRB = 40, 41, 42, 43, 44, 45, 46, 47
sORD = 48
sROT = 50
sQB, sHEAD, sPAR = 51, 52, 53
sK0, sK1 = 54, 55
sFG, sKS = 56, 57
sT = [58, 59, 60, 61, 62, 63]
sVM = 88
sCNT = 90; sCNT2 = 91; sPASS = 92
sST = 64

ORDERS = [[0,4,1,2,3,8,5,6,7,9],[1,0,5,2,3,4,9,6,7,8],[2,0,1,6,3,4,5,7,8,9],[3,0,1,2,7,4,5,6,8,9]]

def gen(stamp=False, opts=None):
    o = dict(force_fallback=False)
    o.update(opts or {})
    a = Asm()
    uid = [0]
    def lab(p):
        uid[0] += 1; return f"L_{p}_{uid[0]}"
    def ST(n):
        if stamp: a(f"s_memrealtime s[{sST+2*n}:{sST+2*n+1}]")
    t0, t1, t2, t3, t4, t5 = [f"s{x}" for x in sT]

    def poll(load, cond, cnt=sCNT):
        l = lab("poll"); d = lab("polld")
        a(f"s_mov_b32 s{cnt}, 0")
        a(f"{l}:")
        a(load)
        a(f"s_add_u32 s{cnt}, s{cnt}, 1"); a(f"s_cmp_gt_u32 s{cnt}, {SPIN}")
        a("s_waitcnt vmcnt(0)")
        a(f"s_cbranch_scc1 {d}")
        a(cond)
        a(f"s_cbranch_vccnz {l}")
        a(f"{d}:")

    a("s_cmp_ge_u32 s2, 256"); a("s_cbranch_scc1 L_end")
    a("s_load_dwordx16 s[64:79], s[0:1], 0")
    a("s_load_dwordx8 s[80:87], s[0:1], 64")
    if stamp: a("s_memrealtime s[94:95]")
    a("s_getpc_b64 s[96:97]")
    a("v_lshrrev_b32 v1, 6, v0"); a("v_and_b32 v0, 63, v0")
    a(f"s_and_b32 s{sXCD}, s2, 7"); a(f"s_lshr_b32 s{sIDX}, s2, 3")
    a(f"v_readfirstlane_b32 s{sWAVE}, v1")
    a(f"s_lshl_b32 {t0}, s{sIDX}, 3"); a(f"v_add_u32 v1, {t0}, v1"); a("v_lshlrev_b32 v1, 7, v1")
    a("v_min_u32 v1, CODE_BYTES, v1")
    a("global_load_dword v200, v1, s[96:97]")
    a(f"s_lshr_b32 s{sHG}, s{sXCD}, 2"); a(f"s_and_b32 s{sTQ}, s{sXCD}, 3")
    a(f"s_and_b32 s{sI}, s{sIDX}, 3"); a(f"s_lshr_b32 s{sJ}, s{sIDX}, 2")
    a(f"s_lshl_b32 s{sRB}, s{sTQ}, 2"); a(f"s_add_u32 s{sRB}, s{sRB}, s{sI}")
    a(f"s_add_u32 {t0}, s{sI}, s{sJ}"); a(f"s_and_b32 {t0}, {t0}, 3")
    for g, od in enumerate(ORDERS):
        v = sum(s << (4*n) for n, s in enumerate(od))
        if g == 0:
            a(f"s_mov_b32 s{sORD}, {v & 0xffffffff}"); a(f"s_mov_b32 s{sORD+1}, {v >> 32}")
        else:
            a(f"s_cmp_eq_u32 {t0}, {g}")
            a(f"s_cselect_b32 s{sORD}, {v & 0xffffffff}, s{sORD}"); a(f"s_cselect_b32 s{sORD+1}, {v >> 32}, s{sORD+1}")
    a(f"s_mul_i32 s{sROT}, s{sXCD}, 5"); a(f"s_lshr_b32 s{sROT}, s{sROT}, 2")
    def next_stage(dst):
        a(f"s_and_b32 {dst}, s{sORD}, 15"); a(f"s_lshr_b64 s[{sORD}:{sORD+1}], s[{sORD}:{sORD+1}], 4")
        a(f"s_add_u32 {dst}, {dst}, s{sROT}"); a(f"s_sub_u32 {t5}, {dst}, 10"); a(f"s_cmp_ge_u32 {dst}, 10"); a(f"s_cselect_b32 {dst}, {t5}, {dst}")
    def group_col(dst, grp):
        a(f"s_mul_i32 {t4}, {grp}, 52"); a(f"s_lshr_b32 {t4}, {t4}, 8")
        a(f"s_mul_i32 {t5}, {t4}, 320"); a(f"s_lshl_b32 {dst}, {grp}, 6"); a(f"s_add_u32 {dst}, {dst}, {t5}")
        a(f"s_mul_i32 {t5}, s{sHG}, 320"); a(f"s_add_u32 {dst}, {dst}, {t5}")
    def build_srds():
        for (r, src, n) in [(sX,64,2621440),(sWQ,66,2457600),(sWS,86,WS_SIZE),(sWO,68,819200),(sOUT,82,2621440),(sWG,74,1966080),(sWU,76,1966080),(sWD,78,1966080),(sDBG,84,256)]:
            a(f"s_mov_b32 s{r}, s{src}"); a(f"s_mov_b32 s{r+1}, s{src+1}"); a(f"s_mov_b32 s{r+2}, {n}"); a(f"s_mov_b32 s{r+3}, 0x20000")
    def roles():
        a(f"s_and_b32 {t0}, s{sIDX}, 1"); a(f"s_lshl_b32 s{sQB}, s{sTQ}, 1"); a(f"s_add_u32 s{sQB}, s{sQB}, {t0}")
        a(f"s_lshr_b32 {t0}, s{sIDX}, 1"); a(f"s_lshl_b32 s{sHEAD}, s{sHG}, 4"); a(f"s_add_u32 s{sHEAD}, s{sHEAD}, {t0}")
        a(f"s_and_b32 s{sPAR}, s{sHEAD}, 1")
        a(f"s_mul_i32 {t0}, s{sIDX}, 26"); a(f"s_lshr_b32 {t0}, {t0}, 8")
        a(f"s_mul_i32 {t1}, {t0}, 10"); a(f"s_sub_u32 s{sKS}, s{sIDX}, {t1}")
        a(f"s_mul_i32 s{sFG}, s{sXCD}, 3"); a(f"s_add_u32 s{sFG}, s{sFG}, {t0}")
        a(f"s_mov_b32 s{sVM}, 0x000fffff"); a(f"s_mov_b32 s{sVM+1}, 0x000fffff")
    a(f"s_cmp_lt_u32 s{sWAVE}, 4"); a("s_cbranch_scc1 L_compute")

    LW = "s3"
    a(f"s_sub_u32 {LW}, s{sWAVE}, 4")
    a("v_lshrrev_b32 v3, 3, v0"); a("v_and_b32 v4, 7, v0"); a("v_lshrrev_b32 v5, 4, v0")
    a("v_xor_b32 v6, v4, v5"); a("v_lshlrev_b32 v6, 4, v6")
    a(f"s_lshl_b32 {t0}, s{sRB}, 7"); a(f"s_lshl_b32 {t1}, {LW}, 5"); a(f"s_add_u32 {t0}, {t0}, {t1}")
    a(f"v_add_u32 v7, {t0}, v3"); a("v_mul_u32_u24 v7, 1280, v7")
    a("v_add_u32 v10, v7, v6"); a("v_xor_b32 v6, 64, v6"); a("v_add_u32 v11, v7, v6"); a(f"v_add_u32 v11, {8*1280}, v11")
    a(f"v_add_u32 v12, {16*1280}, v10"); a(f"v_add_u32 v13, {16*1280}, v11")
    a("v_and_b32 v5, 1, v5"); a("v_lshlrev_b32 v5, 2, v5"); a("v_xor_b32 v6, v4, v5"); a("v_lshlrev_b32 v6, 4, v6")
    a(f"s_lshr_b32 {t0}, {LW}, 1"); a(f"s_lshl_b32 {t1}, s{sJ}, 1"); a(f"s_add_u32 {t1}, {t1}, {t0}")
    group_col(t2, t1)
    a(f"s_lshl_b32 {t2}, {t2}, 1")
    a(f"s_and_b32 {t0}, {LW}, 1"); a(f"s_mul_i32 {t0}, {t0}, {32*3840}"); a(f"s_add_u32 {t2}, {t2}, {t0}")
    a("v_mul_u32_u24 v7, 3840, v3"); a(f"v_add3_u32 v14, v7, v6, {t2}")
    for i in range(1, 4): a(f"v_add_u32 v{14+i}, {i*8*3840}, v14")
    a(f"s_lshl_b32 s93, {LW}, 12")
    a("s_waitcnt lgkmcnt(0)")
    for (r, src, n) in [(sX,64,2621440),(sWQ,66,2457600)]:
        a(f"s_mov_b32 s{r}, s{src}"); a(f"s_mov_b32 s{r+1}, s{src+1}"); a(f"s_mov_b32 s{r+2}, {n}"); a(f"s_mov_b32 s{r+3}, 0x20000")
    a(f"s_mov_b32 s{sCNT}, 0")
    a(f"s_cmp_eq_u32 {t1}, 15"); a("s_cbranch_scc1 L_ld_x")
    for variant in ("xw", "x"):
        per = 8 if variant == "xw" else 4
        a(f"L_ld_{variant}:")
        next_stage(t0)
        a(f"s_lshl_b32 {t1}, {t0}, 7"); a(f"s_mul_i32 {t2}, {t0}, {64*3840}")
        a(f"s_add_u32 {t3}, s{sCNT}, 3"); a(f"s_and_b32 {t3}, {t3}, 3"); a(f"s_lshl_b32 {t3}, {t3}, 14"); a(f"s_add_u32 {t3}, {t3}, s93")
        for i in range(4):
            a(f"s_add_u32 m0, {t3}, {L_X + i*1024}")
            a(f"buffer_load_dwordx4 v{10+i}, {srd(sX)}, {t1} offen lds")
        if variant == "xw":
            a(f"s_add_u32 {t3}, s{sCNT}, 2"); a(f"s_and_b32 {t3}, {t3}, 3"); a(f"s_lshl_b32 {t3}, {t3}, 14"); a(f"s_add_u32 {t3}, {t3}, s93")
            for i in range(4):
                a(f"s_add_u32 m0, {t3}, {L_W + i*1024}")
                a(f"buffer_load_dwordx4 v{14+i}, {srd(sWQ)}, {t2} offen lds")
        a(f"s_add_u32 s{sCNT}, s{sCNT}, 1")
        a(f"s_cmp_lt_u32 s{sCNT}, 3"); a(f"s_cbranch_scc1 L_ld_{variant}")
        a(f"s_waitcnt vmcnt({2*per})"); a("s_barrier")
        a(f"s_cmp_lt_u32 s{sCNT}, 10"); a(f"s_cbranch_scc1 L_ld_{variant}")
        a(f"s_waitcnt vmcnt({per})"); a("s_barrier")
        if variant == "xw": a("s_branch L_ld_tail")
    a("L_ld_tail:")
    build_srds(); roles()
    a("v_lshlrev_b32 v6, 4, v4")
    a(f"s_lshl_b32 {t0}, {LW}, 4"); a(f"v_add_u32 v7, {t0}, v3")
    a("v_mul_u32_u24 v8, 3072, v7"); a("v_add_u32 v8, v8, v6"); a(f"v_add_u32 v9, {8*3072}, v8")
    a("v_mul_u32_u24 v10, 1280, v7"); a("v_add_u32 v10, v10, v6"); a(f"v_add_u32 v11, {8*1280}, v10")
    a(f"s_mul_i32 {t1}, s{sKS}, {64*3072}"); a(f"s_lshl_b32 {t2}, s{sFG}, 7"); a(f"s_add_u32 {t1}, {t1}, {t2}")
    a(f"s_mul_i32 {t2}, s{sFG}, {64*1280}"); a(f"s_lshl_b32 {t3}, s{sKS}, 7"); a(f"s_add_u32 {t2}, {t2}, {t3}")
    a(f"s_lshl_b32 {t3}, {LW}, 11")
    a(f"s_cmp_ge_u32 s{sIDX}, 30"); a("s_cbranch_scc1 L_ld_noffn")
    for (base, sr, v, so) in [(L_FFA, sWG, 8, t1), (L_FFA + 8192, sWU, 8, t1), (L_FFB, sWD, 10, t2)]:
        for i in range(2):
            a(f"s_add_u32 m0, {t3}, {base + i*1024}")
            a(f"buffer_load_dwordx4 v{v+i}, {srd(sr)}, {so} offen lds")
    a("s_waitcnt vmcnt(6)"); a("s_branch L_ld_b9")
    a("L_ld_noffn:")
    a("s_waitcnt vmcnt(0)")
    a("L_ld_b9:")
    a("s_barrier")
    ST(0)
    a(f"s_cmp_ge_u32 s{sIDX}, 30"); a("s_cbranch_scc1 L_ld_wo")
    def load_top2():
        a("v_and_b32 v20, 15, v0")
        a("v_lshlrev_b32 v20, 7, v20"); a(f"v_add_u32 v20, {FL_C}, v20")
        poll(f"buffer_load_dwordx2 v[22:23], v20, {srd(sWS)}, 0 offen sc1", "v_cmp_eq_u32 vcc, 0, v23")
        def rmax(dst, src):
            a(f"v_max_u32_dpp {dst}, {src}, {src} row_ror:8 row_mask:0xf bank_mask:0xf")
            for sh in (4, 2, 1): a(f"v_max_u32_dpp {dst}, {dst}, {dst} row_ror:{sh} row_mask:0xf bank_mask:0xf")
        rmax("v24", "v22")
        a("v_cmp_eq_u32 vcc, v24, v22"); a("v_cndmask_b32 v22, v22, v23, vcc")
        rmax("v25", "v22")
        a(f"v_readfirstlane_b32 s{sK0}, v24"); a(f"v_readfirstlane_b32 s{sK1}, v25")
    load_top2()
    ST(1)
    a(f"v_mov_b32 v26, {L_CNT+4}"); a("v_mov_b32 v27, 1")
    a("s_mov_b64 exec, 1"); a("ds_add_u32 v26, v27"); a("s_mov_b64 exec, -1")
    a(f"s_not_b32 {t0}, s{sK0}"); a(f"s_and_b32 {t0}, {t0}, 2047"); a(f"s_mul_i32 {t0}, {t0}, 1280")
    a(f"s_not_b32 {t1}, s{sK1}"); a(f"s_and_b32 {t1}, {t1}, 2047"); a(f"s_mul_i32 {t1}, {t1}, 1280")
    a("v_and_b32 v20, 1, v0"); a("v_cmp_eq_u32 vcc, 1, v20"); a(f"v_mov_b32 v20, {t0}"); a(f"v_mov_b32 v21, {t1}")
    a("v_cndmask_b32 v20, v20, v21, vcc"); a("v_and_b32 v21, 48, v0"); a("v_add_u32 v20, v20, v21")
    a(f"s_lshl_b32 {t0}, s{sKS}, 7")
    a(f"buffer_load_dwordx4 v[28:31], v20, {srd(sX)}, {t0} offen")
    a(f"buffer_load_dwordx4 v[32:35], v20, {srd(sX)}, {t0} offen offset:64")
    l = lab("cw"); d = lab("cwd")
    a(f"s_mov_b32 s{sCNT}, 0")
    a(f"{l}:"); a("ds_read_b32 v27, v26"); a(f"s_add_u32 s{sCNT}, s{sCNT}, 1"); a(f"s_cmp_gt_u32 s{sCNT}, {SPIN*8}")
    a("s_waitcnt lgkmcnt(0)"); a(f"s_cbranch_scc1 {d}"); a("v_cmp_gt_u32 vcc, 4, v27"); a(f"s_cbranch_vccnz {l}"); a(f"{d}:")
    a("v_lshrrev_b32 v21, 4, v0"); a("v_lshlrev_b32 v21, 3, v21"); a("v_bfe_u32 v22, v0, 2, 2"); a("v_add_u32 v21, v21, v22")
    a("v_lshlrev_b32 v21, 7, v21"); a("v_and_b32 v22, 3, v0"); a("v_lshl_add_u32 v21, v22, 3, v21")
    a(f"s_lshl_b32 {t0}, {LW}, 5"); a(f"s_add_u32 {t0}, {t0}, {L_FFA}"); a(f"v_add_u32 v22, {t0}, v21")
    for mat in range(2):
        for s in range(2):
            for jj in range(2):
                r = 36 + mat*8 + s*4 + jj*2
                a(f"ds_read_b64_tr_b16 v[{r}:{r+1}], v22 offset:{mat*8192 + (32*s + 4*jj)*128}")
    a(f"s_cmp_lg_u32 {LW}, 0"); a("s_cbranch_scc1 L_ffa_nob")
    a(f"v_add_u32 v22, {L_FFB}, v21")
    a("s_waitcnt lgkmcnt(0)")
    for ct in range(4):
        for s in range(2):
            for jj in range(2):
                r = 224 + ct*8 + s*4 + jj*2
                a(f"ds_read_b64_tr_b16 v[{r}:{r+1}], v22 offset:{ct*32 + (32*s + 4*jj)*128}")
        if ct == 1: a("s_waitcnt lgkmcnt(0)")
    a("L_ffa_nob:")
    a("s_waitcnt vmcnt(0) lgkmcnt(0)")
    for mat in range(2):
        a(f"v_mfma_f32_16x16x32_bf16 v[{52+mat*4}:{55+mat*4}], v[{36+mat*8}:{39+mat*8}], v[28:31], 0")
    for mat in range(2):
        a(f"v_mfma_f32_16x16x32_bf16 v[{52+mat*4}:{55+mat*4}], v[{40+mat*8}:{43+mat*8}], v[32:35], v[{52+mat*4}:{55+mat*4}]")
    a("v_and_b32 v20, 1, v0"); a("v_lshlrev_b32 v20, 8, v20"); a("v_and_b32 v21, 48, v0"); a("v_add_u32 v20, v20, v21")
    a(f"s_mul_i32 {t0}, s{sFG}, 10"); a(f"s_add_u32 {t0}, {t0}, s{sKS}"); a(f"s_lshl_b32 {t0}, {t0}, 10")
    a(f"s_lshl_b32 {t1}, {LW}, 6"); a(f"s_add_u32 {t0}, {t0}, {t1}"); a(f"s_add_u32 {t0}, {t0}, {WS_FA}")
    a("s_mov_b32 exec_lo, 0x00030003"); a("s_mov_b32 exec_hi, 0x00030003")
    a(f"buffer_store_dwordx4 v[52:55], v20, {srd(sWS)}, {t0} offen sc1")
    a(f"buffer_store_dwordx4 v[56:59], v20, {srd(sWS)}, {t0} offen offset:512 sc1")
    a("s_mov_b64 exec, 1")
    a(f"s_lshl_b32 {t0}, s2, 7"); a(f"s_lshl_b32 {t1}, {LW}, 2"); a(f"s_add_u32 {t0}, {t0}, {t1}"); a(f"s_add_u32 {t0}, {t0}, {FL_A}")
    a("v_mov_b32 v20, 0"); a("v_mov_b32 v21, 1")
    a("s_waitcnt vmcnt(0)")
    a(f"buffer_store_dword v21, v20, {srd(sWS)}, {t0} offen sc1")
    a("s_mov_b64 exec, -1")
    ST(2)
    a("L_ld_wo:")
    for i in range(5):
        a(f"v_add_u32 v20, {64*i}, v0"); a("v_mul_u32_u24 v21, 6554, v20"); a("v_lshrrev_b32 v21, 16, v21")
        a("v_mul_u32_u24 v22, 10, v21"); a("v_sub_u32 v22, v20, v22"); a("v_lshlrev_b32 v22, 4, v22")
        a("v_mul_u32_u24 v21, 1280, v21"); a(f"v_add_u32 v{10+i}, v21, v22")
    a(f"s_mul_i32 {t0}, s{sJ}, 160")
    a(f"s_add_u32 {t2}, {LW}, s{sI}"); a(f"s_and_b32 {t2}, {t2}, 3")
    a(f"s_mul_i32 {t1}, {t2}, {160*1280}"); a(f"s_add_u32 {t0}, {t0}, {t1}")
    a(f"s_mul_i32 {t1}, {t2}, {160*160}"); a(f"s_add_u32 {t1}, {t1}, {L_WO}")
    a(f"s_mov_b32 s{sCNT}, 0")
    a("L_wo_loop:")
    for i in range(5):
        a(f"s_add_u32 m0, {t1}, {i*1024}")
        a(f"buffer_load_dwordx4 v{10+i}, {srd(sWO)}, {t0} offen lds")
    a(f"s_add_u32 {t0}, {t0}, {32*1280}"); a(f"s_add_u32 {t1}, {t1}, 5120")
    a(f"s_add_u32 s{sCNT}, s{sCNT}, 1"); a(f"s_cmp_lt_u32 s{sCNT}, 5"); a("s_cbranch_scc1 L_wo_loop")
    ST(3)
    a("s_branch L_att")

    a("L_compute:")
    WR, WC = "s3", "s93"
    a(f"s_and_b32 {WR}, s{sWAVE}, 1"); a(f"s_lshr_b32 {WC}, s{sWAVE}, 1")
    a("s_waitcnt lgkmcnt(0)")
    build_srds(); roles()
    a(f"s_cmp_lg_u32 s{sWAVE}, 0"); a("s_cbranch_scc1 L_noclr")
    a("v_mov_b32 v4, 0"); a("v_mov_b32 v5, 0"); a(f"v_mov_b32 v8, {L_CNT}")
    a("ds_write_b64 v8, v[4:5]")
    a("s_waitcnt lgkmcnt(0)")
    a("L_noclr:")
    a("v_and_b32 v10, 31, v0"); a("v_lshrrev_b32 v11, 5, v0"); a("v_bfe_u32 v12, v0, 1, 3"); a("v_xor_b32 v12, v12, v11")
    a("v_lshlrev_b32 v12, 4, v12"); a("v_lshl_add_u32 v2, v10, 7, v12")
    a(f"s_lshl_b32 {t1}, s{sJ}, 1"); a(f"s_add_u32 {t1}, {t1}, {WC}")
    a(f"s_cmp_eq_u32 {t1}, 15"); a("s_cbranch_scc1 L_aux")
    a(f"s_lshl_b32 {t0}, {WR}, 13"); a(f"v_add_u32 v2, {t0}, v2")
    for ks in range(1, 4): a(f"v_xor_b32 v{2+ks}, {ks << 5}, v2")
    a("v_bfe_u32 v12, v0, 2, 2"); a("v_lshl_add_u32 v13, v11, 3, v12"); a("v_lshlrev_b32 v13, 7, v13")
    a("v_bfe_u32 v14, v0, 3, 1"); a("v_lshl_add_u32 v13, v14, 6, v13")
    a("v_bfe_u32 v14, v0, 4, 1"); a("v_lshl_add_u32 v13, v14, 5, v13")
    a(f"s_lshl_b32 {t0}, {WC}, 13"); a(f"s_add_u32 {t0}, {t0}, {L_W}"); a(f"v_add_u32 v13, {t0}, v13")
    a("v_and_b32 v9, 7, v0"); a("v_lshlrev_b32 v9, 2, v9")
    group_col(t2, t1)
    a(f"s_cmp_ge_u32 {t1}, 10"); a("s_cbranch_scc1 L_gemm_v")

    XF = lambda b, tr: f"v[{16+b*16+tr*4}:{19+b*16+tr*4}]"
    WF = lambda b, tc: (24+b*16+tc*4)
    ACC = lambda tr, tc: f"v[{64+(tr*2+tc)*16}:{79+(tr*2+tc)*16}]"
    def arrival_check():
        d = lab("arr")
        a(f"s_cmp_lg_u32 s{sWAVE}, 0"); a(f"s_cbranch_scc1 {d}")
        a("s_waitcnt vmcnt(0)")
        cond = "v_cmp_eq_u32 vcc, 0, v48"
        a(cond); a(f"s_cbranch_vccz {d}")
        poll(f"buffer_load_dword v48, v9, {srd(sDBG)}, 0 offen sc1", cond)
        a(f"{d}:")
    def gemm1(swapped):
        def reads(q):
            s, ks, b = q >> 2, q & 3, q & 1
            xs, wsl = (s+3) & 3, (s+2) & 3
            for tr in range(2): a(f"ds_read_b128 {XF(b,tr)}, v{2+ks} offset:{xs*16384 + tr*4096}")
            for tc in range(2):
                for j in range(2):
                    r = WF(b, tc) + 2*j
                    a(f"ds_read_b64_tr_b16 v[{r}:{r+1}], v{6+tc} offset:{wsl*16384 + (16*ks + 4*j)*128}")
        a("s_barrier"); reads(0)
        for q in range(40):
            b = q & 1
            if q == 24:
                d = lab("arl"); a(f"s_cmp_lg_u32 s{sWAVE}, 0"); a(f"s_cbranch_scc1 {d}")
                a(f"buffer_load_dword v48, v9, {srd(sDBG)}, 0 offen sc1"); a(f"{d}:")
            if q + 1 < 40:
                if (q+1) & 3 == 0:
                    if q == 35: arrival_check()
                    a("s_waitcnt lgkmcnt(0)"); a("s_barrier"); reads(q+1)
                else:
                    reads(q+1); a("s_waitcnt lgkmcnt(6)")
            else: a("s_waitcnt lgkmcnt(0)")
            for tr in range(2):
                for tc in range(2):
                    w = f"v[{WF(b,tc)}:{WF(b,tc)+3}]"
                    A, B = (w, XF(b,tr)) if swapped else (XF(b,tr), w)
                    a(f"v_mfma_f32_32x32x16_bf16 {ACC(tr,tc)}, {A}, {B}, {ACC(tr,tc) if q else '0'}")
    def pack(tr, tc, u, scale):
        base = 64 + (tr*2+tc)*16 + u*8
        dst = 16 + ((tr*2+tc)*2+u)*4
        for k in range(4):
            if scale: a(f"v_pk_mul_f32 v[{base+2*k}:{base+2*k+1}], v[{base+2*k}:{base+2*k+1}], s[{sT[0]}:{sT[1]}]")
            a(f"v_cvt_pk_bf16_f32 v{dst+k}, v{base+2*k}, v{base+2*k+1}")
        return f"v[{dst}:{dst+3}]"
    a("v_bfe_u32 v14, v0, 0, 1"); a("v_lshl_add_u32 v13, v14, 4, v13"); a("v_bfe_u32 v14, v0, 1, 1"); a("v_lshl_add_u32 v6, v14, 3, v13")
    a("v_xor_b32 v7, 64, v6")
    a("v_lshlrev_b32 v8, 15, v11"); a("v_lshl_add_u32 v8, v10, 4, v8")
    a(f"s_lshl_b32 s98, {t2}, 12"); a(f"s_lshl_b32 {t3}, s{sRB}, 11"); a(f"s_add_u32 s98, s98, {t3}"); a(f"s_lshl_b32 {t3}, {WR}, 10"); a(f"s_add_u32 s98, s98, {t3}")
    a(f"s_cmp_lt_u32 {t1}, 5"); a(f"s_cselect_b32 s99, {f2u(QSCALE)}, 1.0")
    gemm1(True)
    ST(0)
    a(f"s_mov_b32 {t0}, s99"); a(f"s_mov_b32 {t1}, s99")
    for tr in range(2):
        for tc in range(2):
            for u in range(2):
                r = pack(tr, tc, u, True)
                a(f"s_add_u32 {t2}, s98, {(4*tc + 2*u)*32768}")
                a(f"buffer_store_dwordx4 {r}, v8, {srd(sWS)}, {t2} offen offset:{tr*512} sc1")
    a("s_branch L_g1done")
    a("L_gemm_v:")
    a("v_and_b32 v14, 3, v0"); a("v_lshl_add_u32 v6, v14, 3, v13"); a("v_xor_b32 v7, 64, v6")
    a(f"s_sub_u32 {t2}, {t2}, 1280")
    for tc in range(2):
        a(f"v_add_u32 v12, {t2}, v10")
        if tc: a("v_add_u32 v12, 32, v12")
        a("v_mul_u32_u24 v13, 3277, v12"); a("v_lshrrev_b32 v13, 16, v13")
        a("v_mul_u32_u24 v14, 20, v13"); a("v_sub_u32 v14, v12, v14")
        a("v_mul_u32_u24 v13, 81920, v13"); a("v_lshl_add_u32 v13, v14, 4, v13")
        a("v_mul_u32_u24 v14, 320, v11"); a(f"v_add_u32 v{(8, 15)[tc]}, v13, v14")
    a(f"s_lshl_b32 {t3}, s{sRB}, 1"); a(f"s_add_u32 {t3}, {t3}, {WR}"); a(f"s_mul_i32 s98, {t3}, 2560"); a(f"s_add_u32 s98, s98, {WS_VT}")
    gemm1(False)
    ST(0)
    for tr in range(2):
        for tc in range(2):
            for u in range(2):
                r = pack(tr, tc, u, False)
                a(f"buffer_store_dwordx4 {r}, v{(8, 15)[tc]}, {srd(sWS)}, s98 offen offset:{tr*1280 + u*640} sc1")
    a("s_branch L_g1done")
    a("L_aux:")
    a(f"s_lshr_b32 {t0}, s{sI}, 1"); a(f"s_cmp_eq_u32 {t0}, s{sHG}"); a(f"s_cselect_b32 {t0}, {WR}, 1")
    a(f"s_cmp_eq_u32 {t0}, 0"); a("s_cbranch_scc1 L_aux_go")
    a(f"s_cmp_lg_u32 s{sIDX}, 31"); a("s_cbranch_scc1 L_idle"); a(f"s_cmp_lg_u32 s{sWAVE}, 3"); a("s_cbranch_scc1 L_idle")
    a("v_mov_b32 v4, 0"); a("v_mov_b32 v5, 0"); a("v_mov_b32 v6, 0"); a("v_mov_b32 v7, 0"); a("v_lshlrev_b32 v3, 7, v0")
    a(f"s_mul_i32 {t0}, s{sXCD}, {160*128}"); a(f"s_add_u32 {t0}, {t0}, {WS_FLG}")
    a(f"buffer_store_dwordx4 v[4:7], v3, {srd(sWS)}, {t0} offen sc1"); a(f"s_add_u32 {t0}, {t0}, 8192")
    a(f"buffer_store_dwordx4 v[4:7], v3, {srd(sWS)}, {t0} offen sc1"); a(f"s_add_u32 {t0}, {t0}, 8192")
    a("s_mov_b32 exec_hi, 0")
    a(f"buffer_store_dwordx4 v[4:7], v3, {srd(sWS)}, {t0} offen sc1")
    a("s_mov_b64 exec, 1"); a("v_mov_b32 v9, 1"); a(f"s_lshl_b32 {t0}, s{sXCD}, 2")
    a("s_waitcnt vmcnt(0)")
    a(f"buffer_store_dword v9, v3, {srd(sDBG)}, {t0} offen sc1")
    a("s_mov_b64 exec, -1")
    a("L_idle:")
    for s in range(10): a("s_barrier")
    a("s_branch L_g1done")
    a("L_aux_go:")
    for ks in range(1, 4): a(f"v_xor_b32 v{2+ks}, {ks << 5}, v2")
    a("v_lshlrev_b32 v12, 4, v0"); a(f"v_add_u32 v13, {L_AUX}, v12")
    a("global_load_dwordx4 v[16:19], v12, s[72:73]"); a("global_load_dwordx4 v[20:23], v12, s[80:81]")
    a("s_mov_b64 exec, 0xffff")
    a("global_load_dwordx4 v[24:27], v12, s[72:73] offset:1024"); a("global_load_dwordx4 v[28:31], v12, s[80:81] offset:1024")
    a("s_waitcnt vmcnt(0)")
    a("ds_write_b128 v13, v[24:27] offset:1024"); a("ds_write_b128 v13, v[28:31] offset:2304")
    a("s_mov_b64 exec, -1")
    a("ds_write_b128 v13, v[16:19]"); a("ds_write_b128 v13, v[20:23] offset:1280")
    a("v_and_b32 v12, 1, v0"); a("v_mul_u32_u24 v12, 1280, v12"); a("v_lshl_add_u32 v12, v11, 4, v12"); a(f"v_add_u32 v6, {L_AUX}, v12")
    for k in range(64): a(f"v_mov_b32 v{64+k}, 0")
    a(f"s_mov_b32 s{sCNT}, 0")
    a("L_aux_loop:")
    next_stage(t0)
    a(f"s_lshl_b32 {t0}, {t0}, 7"); a(f"v_add_u32 v7, {t0}, v6")
    a(f"s_add_u32 {t3}, s{sCNT}, 3"); a(f"s_and_b32 {t3}, {t3}, 3"); a(f"s_lshl_b32 {t3}, {t3}, 14")
    for ks in range(4): a(f"v_add_u32 v{12+ks}, {t3}, v{2+ks}")
    a("s_waitcnt lgkmcnt(0)"); a("s_barrier")
    def auxreads(ks):
        b = ks & 1
        a(f"ds_read_b128 v[{16+b*20}:{19+b*20}], v7 offset:{ks*32}")
        for tr in range(4): a(f"ds_read_b128 v[{20+b*20+tr*4}:{23+b*20+tr*4}], v{12+ks} offset:{tr*4096}")
    auxreads(0)
    for ks in range(4):
        b = ks & 1
        if ks < 3: auxreads(ks+1); a("s_waitcnt lgkmcnt(5)")
        else: a("s_waitcnt lgkmcnt(0)")
        for tr in range(4):
            a(f"v_mfma_f32_32x32x16_bf16 v[{64+tr*16}:{79+tr*16}], v[{16+b*20}:{19+b*20}], v[{20+b*20+tr*4}:{23+b*20+tr*4}], v[{64+tr*16}:{79+tr*16}]")
    a(f"s_add_u32 s{sCNT}, s{sCNT}, 1"); a(f"s_cmp_lt_u32 s{sCNT}, 10"); a("s_cbranch_scc1 L_aux_loop")
    a("v_cmp_lt_u32 vcc, 31, v0")
    a("v_cndmask_b32 v16, v64, v96, vcc"); a("v_cndmask_b32 v17, v80, v112, vcc")
    a("v_cndmask_b32 v18, v65, v97, vcc"); a("v_cndmask_b32 v19, v81, v113, vcc")
    a("v_lshl_add_u32 v20, v11, 6, v10"); a(f"s_lshl_b32 {t0}, s{sRB}, 7"); a(f"v_add_u32 v20, {t0}, v20")
    for k in range(2):
        a(f"v_cvt_pk_bf16_f32 v21, 0, v{16+k}")
        a("v_ashrrev_i32 v22, 31, v21"); a("v_or_b32 v22, 0x80000000, v22"); a("v_xor_b32 v21, v21, v22"); a("v_and_b32 v21, 0xffff0000, v21")
        a(f"v_sub_u32 v22, {0x8000 + 2047 - 32*k}, v20"); a(f"v_or_b32 v{24+k}, v21, v22")
    a("v_max_u32 v26, v24, v25"); a("v_min_u32 v27, v24, v25")
    def wmax(dst, src):
        a(f"v_max_u32_dpp {dst}, {src}, {src} row_ror:8 row_mask:0xf bank_mask:0xf")
        for sh in (4, 2, 1): a(f"v_max_u32_dpp {dst}, {dst}, {dst} row_ror:{sh} row_mask:0xf bank_mask:0xf")
        a(f"v_readlane_b32 {t0}, {dst}, 0"); a(f"v_readlane_b32 {t1}, {dst}, 16"); a(f"v_readlane_b32 {t2}, {dst}, 32"); a(f"v_readlane_b32 {t3}, {dst}, 48")
        a(f"s_max_u32 {t0}, {t0}, {t1}"); a(f"s_max_u32 {t2}, {t2}, {t3}"); a(f"s_max_u32 {t0}, {t0}, {t2}")
    wmax("v28", "v26"); a(f"s_mov_b32 {t4}, {t0}")
    a(f"v_cmp_eq_u32 vcc, {t4}, v26"); a("v_cndmask_b32 v26, v26, v27, vcc")
    wmax("v28", "v26")
    a(f"v_mov_b32 v28, {t4}"); a(f"v_mov_b32 v29, {t0}"); a("v_mov_b32 v30, 0")
    a(f"s_lshl_b32 {t1}, s{sRB}, 7"); a(f"s_add_u32 {t1}, {t1}, {FL_C}")
    a("s_mov_b64 exec, 1")
    a(f"buffer_store_dwordx2 v[28:29], v30, {srd(sWS)}, {t1} offen sc1")
    a("s_mov_b64 exec, -1")
    for k in range(2):
        a(f"v_mul_f32 v{18+k}, {f2u(-math.log2(math.e))}, v{18+k}"); a(f"v_exp_f32 v{18+k}, v{18+k}")
        a(f"v_add_f32 v{18+k}, 1.0, v{18+k}"); a(f"v_rcp_f32 v{18+k}, v{18+k}")
    a("v_lshlrev_b32 v20, 2, v20"); a(f"s_mov_b32 {t1}, {WS_G}")
    a(f"buffer_store_dword v18, v20, {srd(sWS)}, {t1} offen sc1")
    a(f"buffer_store_dword v19, v20, {srd(sWS)}, {t1} offen offset:128 sc1")
    a("L_g1done:")
    a(f"v_mov_b32 v2, {L_CNT}"); a("v_mov_b32 v3, 1")
    a("s_waitcnt vmcnt(0)")
    ST(1)
    a("s_mov_b64 exec, 1"); a("ds_add_rtn_u32 v4, v2, v3"); a("s_waitcnt lgkmcnt(0)")
    a(f"v_readfirstlane_b32 {t0}, v4"); a("s_mov_b64 exec, -1")
    a(f"s_cmp_lg_u32 {t0}, 3"); a("s_cbranch_scc1 L_att")
    a(f"s_lshl_b32 {t0}, s2, 7"); a(f"s_add_u32 {t0}, {t0}, {FL_Q}"); a("v_mov_b32 v2, 0")
    a("s_mov_b64 exec, 1")
    a(f"buffer_store_dword v3, v2, {srd(sWS)}, {t0} offen sc1")
    a("s_mov_b32 exec_lo, -1"); a("s_mov_b32 exec_hi, 0")
    a("v_and_b32 v4, 3, v0"); a(f"s_lshl_b32 {t0}, s{sQB}, 1"); a(f"s_sub_u32 {t0}, {t0}, 2"); a(f"v_add_u32 v4, {t0}, v4")
    a("v_max_i32 v4, 0, v4"); a("v_lshrrev_b32 v5, 2, v4"); a("v_and_b32 v4, 3, v4"); a("v_and_b32 v6, 28, v0"); a("v_add_u32 v4, v4, v6")
    a("v_lshl_add_u32 v4, v4, 3, v5"); a(f"s_lshl_b32 {t0}, s{sHG}, 2"); a(f"v_add_u32 v4, {t0}, v4"); a("v_lshlrev_b32 v4, 7, v4")
    a(f"s_mov_b32 {t0}, {FL_Q}")
    a("s_waitcnt vmcnt(0)")
    poll(f"buffer_load_dword v5, v4, {srd(sWS)}, {t0} offen sc1", "v_cmp_ne_u32 vcc, 1, v5")
    a("s_mov_b64 exec, -1")

    a("L_att:")
    vQ0, vQ1 = 2, 6
    vKA, vKX, vVA = 8, 9, 10
    K0 = lambda b: 16 + b*8; K1 = lambda b: 20 + b*8
    VF = lambda b: 32 + b*8
    SB = lambda b: 48 + b*16
    vP = 80; vO = 96; vMD = 112; vMF = 128
    a("v_and_b32 v11, 31, v0"); a("v_lshrrev_b32 v12, 5, v0")
    a("v_lshlrev_b32 v13, 2, v12"); a("v_sub_u32 v13, v11, v13"); a("v_mov_b32 v14, 0xff800000"); a("v_mov_b32 v15, 0")
    for r in range(16):
        a(f"v_cmp_gt_i32 vcc, {(r&3) + 8*(r>>2)}, v13")
        a(f"v_cndmask_b32 v{vMD+r}, v15, v14, vcc"); a(f"v_cndmask_b32 v{vMF+r}, v14, v15, vcc")
    for b in range(2):
        for k in range(2): a(f"v_mov_b32 v{K1(b)+k}, 0x3f803f80")
        for k in range(8): a(f"v_mov_b32 v{VF(b)+k}, 0x3f803f80")
    a(f"v_mov_b32 v{vQ1}, 0"); a(f"v_mov_b32 v{vQ1+1}, 0")
    a(f"s_lshl_b32 {t0}, s{sWAVE}, 9"); a(f"s_add_u32 {t0}, {t0}, {L_K}")
    a(f"v_lshlrev_b32 v13, 4, v11"); a(f"v_lshl_add_u32 v{vKA}, v12, 13, v13"); a(f"v_add_u32 v{vKA}, {t0}, v{vKA}")
    a(f"s_lshl_b32 {t1}, s{sPAR}, 3"); a(f"s_add_u32 {t0}, {t0}, {t1}"); a(f"s_add_u32 {t0}, {t0}, 16384"); a(f"v_add_u32 v{vKX}, {t0}, v13")
    a(f"s_mul_i32 {t0}, s{sWAVE}, 1280"); a(f"s_add_u32 {t0}, {t0}, {L_V}"); a("v_mul_u32_u24 v14, 320, v12"); a(f"v_add3_u32 v{vVA}, v13, v14, {t0}")
    a(f"s_mul_i32 {t0}, s{sHEAD}, 5"); a(f"s_add_u32 {t0}, {t0}, s{sPAR}"); a(f"s_lshl_b32 {t0}, {t0}, 14")
    a(f"s_mul_i32 {t1}, s{sPAR}, {3*32768}"); a(f"s_sub_u32 {t1}, {2*32768}, {t1}"); a(f"s_add_u32 {t1}, {t1}, {t0}")
    a(f"s_lshl_b32 {t2}, s{sQB}, 12")
    a("v_lshl_add_u32 v14, v12, 15, v13")
    a("v_lshlrev_b32 v15, 4, v0")
    a(f"s_lshl_b32 {t3}, s{sWAVE}, 9"); a(f"s_add_u32 {t3}, {t3}, {t2}")
    a(f"s_add_u32 s98, {t3}, {t0}")
    a(f"s_add_u32 s99, {t3}, {t1}"); a(f"s_lshl_b32 {t4}, s{sPAR}, 3"); a(f"s_add_u32 s99, s99, {t4}")
    a(f"s_lshl_b32 {t3}, s{sWAVE}, 10"); a(f"s_add_u32 {t2}, {t2}, {t3}"); a(f"s_add_u32 {t2}, {t2}, {WS_KC - 4096}")
    a(f"s_add_u32 {t0}, {t0}, {t2}"); a(f"s_add_u32 {t1}, {t1}, {t2}")
    a(f"s_mul_i32 {t2}, s{sHEAD}, 81920"); a(f"s_mul_i32 {t4}, s{sQB}, 10240"); a(f"s_add_u32 {t2}, {t2}, {t4}")
    a(f"s_add_u32 {t2}, {t2}, {t3}"); a(f"s_add_u32 {t2}, {t2}, {WS_VT - 10240}")
    a("s_barrier")
    ST(4)
    a(f"buffer_load_dwordx4 v[{vQ0}:{vQ0+3}], v14, {srd(sWS)}, s98 offen sc1")
    a("s_mov_b32 exec_lo, -1"); a("s_mov_b32 exec_hi, 0")
    a(f"buffer_load_dwordx2 v[{vQ1}:{vQ1+1}], v14, {srd(sWS)}, s99 offen sc1")
    a("s_mov_b64 exec, -1")
    a(f"s_lshr_b32 {t4}, s{sWAVE}, 2"); a(f"s_or_b32 {t4}, {t4}, s{sQB}"); a(f"s_cmp_eq_u32 {t4}, 0"); a("s_cbranch_scc1 L_att_nok")
    a(f"s_add_u32 m0, {t3}, {L_K}"); a(f"buffer_load_dwordx4 v15, {srd(sWS)}, {t0} offen sc1 lds")
    a(f"s_add_u32 {t0}, {t0}, 32768")
    a(f"s_add_u32 m0, {t3}, {L_K + 8192}"); a(f"buffer_load_dwordx4 v15, {srd(sWS)}, {t0} offen sc1 lds")
    a(f"s_add_u32 m0, {t3}, {L_K + 16384}"); a(f"buffer_load_dwordx4 v15, {srd(sWS)}, {t1} offen sc1 lds")
    a("L_att_nok:")
    a(f"s_cmp_eq_u32 s{sQB}, 0"); a("s_cbranch_scc1 L_att_v1")
    a(f"s_add_u32 m0, {t3}, {L_V}"); a(f"buffer_load_dwordx4 v15, {srd(sWS)}, {t2} offen sc1 lds")
    a("L_att_v1:")
    a(f"s_add_u32 {t2}, {t2}, 8192")
    a(f"s_lshr_b32 {t4}, s{sWAVE}, 1"); a(f"s_or_b32 {t4}, {t4}, s{sQB}"); a(f"s_cmp_eq_u32 {t4}, 0"); a("s_cbranch_scc1 L_att_v2")
    a(f"s_add_u32 m0, {t3}, {L_V + 8192}"); a(f"buffer_load_dwordx4 v15, {srd(sWS)}, {t2} offen sc1 lds")
    a("L_att_v2:")
    a(f"s_add_u32 {t2}, {t2}, 8192")
    a(f"s_cmp_ge_u32 s{sWAVE}, 4"); a("s_cbranch_scc1 L_att_v3")
    a(f"s_add_u32 m0, {t3}, {L_V + 16384}"); a(f"buffer_load_dwordx4 v15, {srd(sWS)}, {t2} offen sc1 lds")
    a("L_att_v3:")
    a(f"s_sub_u32 s93, 8, s{sWAVE}"); a(f"s_cmp_eq_u32 s{sQB}, 0"); a("s_cselect_b32 s93, s93, 0")
    a(f"s_mov_b32 s{sPASS}, 0")
    a("s_waitcnt vmcnt(0)"); a("s_barrier")
    ST(5)
    def readK(t, b):
        a(f"ds_read_b128 v[{K0(b)}:{K0(b)+3}], v{vKA} offset:{t*512}")
        a("s_mov_b32 exec_hi, 0")
        a(f"ds_read_b64 v[{K1(b)}:{K1(b)+1}], v{vKX} offset:{t*512}")
    def readV(t, b):
        a(f"s_mov_b64 exec, s[{sVM}:{sVM+1}]")
        for u in range(2): a(f"ds_read_b128 v[{VF(b)+4*u}:{VF(b)+4*u+3}], v{vVA} offset:{t*1280 + u*640}")
    S = lambda b: f"v[{SB(b)}:{SB(b)+15}]"
    def qk(t, kb, sb, part=None):
        c = f"v[{vMD}:{vMD+15}]" if t == 8 else (f"v[{vMF}:{vMF+15}]" if t == 0 else "0")
        if part in (None, 0): a(f"v_mfma_f32_32x32x16_bf16 {S(sb)}, v[{K0(kb)}:{K0(kb)+3}], v[{vQ0}:{vQ0+3}], {c}")
        if part in (None, 1): a(f"v_mfma_f32_32x32x8_bf16 {S(sb)}, v[{K1(kb)}:{K1(kb)+1}], v[{vQ1}:{vQ1+1}], {S(sb)}")
    def tilemax(dst, sb, first):
        s = SB(sb)
        a(f"v_max3_f32 {dst}, v{s}, v{s+1}, {f'v{s+2}' if first else dst}")
        k = 3 if first else 2
        while k < 16:
            if k + 1 < 16: a(f"v_max3_f32 {dst}, v{s+k}, v{s+k+1}, {dst}"); k += 2
            else: a(f"v_max_f32 {dst}, v{s+k}, {dst}"); k += 1
    def halves_max(r, tmp):
        a(f"v_mov_b32 {tmp}, {r}"); a(f"v_permlane32_swap_b32 {r}, {tmp}"); a(f"v_max_f32 {r}, {r}, {tmp}")
    readK(8, 0); a("s_mov_b64 exec, -1"); a("s_waitcnt lgkmcnt(0)")
    qk(8, 0, 1)
    tilemax("v11", 1, True); halves_max("v11", "v12")
    a("s_mov_b32 exec_lo, 0")
    a(f"v_cvt_pk_bf16_f32 v{vQ1}, -v11, 0")
    a("s_mov_b64 exec, -1")
    a("L_att_pass:")
    readK(8, 0); a("s_mov_b64 exec, -1")
    readK(7, 1); readV(8, 0); a("s_mov_b64 exec, -1")
    a("s_waitcnt lgkmcnt(4)")
    qk(8, 0, 0)
    for t in range(8, -1, -1):
        b = t & 1
        nb = b ^ 1
        n = 0
        if t >= 2: readK(t-2, b); n += 2
        if t >= 1: readV(t-1, nb); n += 2
        if n: a("s_mov_b64 exec, -1")
        a(f"s_waitcnt lgkmcnt({n})")
        s = SB(b)
        def ex(k): a(f"v_exp_f32 v{s+k}, v{s+k}")
        def cv(k): a(f"v_cvt_pk_bf16_f32 v{vP+k}, v{s+2*k}, v{s+2*k+1}")
        if t >= 1: qk(t-1, nb, nb, 0)
        for k in range(4): ex(k)
        if t >= 1: qk(t-1, nb, nb, 1)
        for k in range(4, 8): ex(k)
        for k in range(4): cv(k)
        ex(8); ex(9)
        a(f"v_mfma_f32_32x32x16_bf16 v[{vO}:{vO+15}], v[{VF(b)}:{VF(b)+3}], v[{vP}:{vP+3}], {'0' if t == 8 else f'v[{vO}:{vO+15}]'}")
        for k in range(10, 16): ex(k)
        for k in range(4, 8): cv(k)
        if t >= 1: a(f"s_cmp_eq_u32 s93, {t}")
        a(f"v_mfma_f32_32x32x16_bf16 v[{vO}:{vO+15}], v[{VF(b)+4}:{VF(b)+7}], v[{vP+4}:{vP+7}], v[{vO}:{vO+15}]")
        if t >= 1: a("s_cbranch_scc1 L_att_done")
    a("L_att_done:")
    a("s_waitcnt lgkmcnt(0)")
    thr = 2.0**-100 if o["force_fallback"] else 2.0**40
    a(f"v_mov_b32 v12, {f2u(thr)}")
    a(f"s_cmp_lg_u32 s{sPASS}, 0"); a("s_cbranch_scc1 L_att_out")
    a(f"v_cmp_nle_f32 s[96:97], v{vO+12}, v12"); a(f"v_cmp_gt_f32 vcc, {f2u(2.0**-40)}, v{vO+12}")
    a("s_or_b64 vcc, vcc, s[96:97]"); a("s_cbranch_vccz L_att_out")
    a(f"s_mov_b32 s{sPASS}, 1")
    a("s_mov_b32 exec_lo, 0"); a(f"v_mov_b32 v{vQ1}, 0"); a(f"v_mov_b32 v{vQ1+1}, 0"); a("s_mov_b64 exec, -1")
    for t in range(8, -1, -1):
        readK(t, 0); a("s_mov_b64 exec, -1"); a("s_waitcnt lgkmcnt(0)")
        qk(t, 0, 0); tilemax("v11", 0, t == 8)
        if t >= 1: a(f"s_cmp_eq_u32 s93, {t}"); a("s_cbranch_scc1 L_att_fb2")
    a("L_att_fb2:")
    halves_max("v11", "v12")
    a("v_and_b32 v12, 0xffff0000, v11"); a("v_sub_f32 v13, v11, v12"); a("v_and_b32 v14, 0xffff0000, v13"); a("v_sub_f32 v13, v13, v14")
    a("s_mov_b32 exec_lo, 0")
    a(f"v_cvt_pk_bf16_f32 v{vQ1}, -v12, -v14"); a(f"v_cvt_pk_bf16_f32 v{vQ1+1}, -v13, 0")
    a("s_mov_b64 exec, -1")
    a("s_branch L_att_pass")
    a("L_att_out:")
    ST(6)
    a(f"v_rcp_f32 v12, v{vO+12}")
    a("v_and_b32 v11, 31, v0"); a("v_lshrrev_b32 v13, 5, v0"); a("v_lshlrev_b32 v14, 4, v11"); a("v_lshl_add_u32 v14, v13, 15, v14"); a("v_lshlrev_b32 v15, 3, v11")
    for k in range(12): a(f"v_mul_f32 v{vO+k}, v12, v{vO+k}")
    for k in range(6): a(f"v_cvt_pk_bf16_f32 v{16+k}, v{vO+2*k}, v{vO+2*k+1}")
    a(f"s_lshl_b32 {t2}, s{sQB}, 3"); a(f"s_add_u32 {t2}, {t2}, s{sWAVE}")
    a(f"s_lshl_b32 {t0}, s{sHEAD}, 16"); a(f"s_lshl_b32 {t1}, {t2}, 9"); a(f"s_add_u32 {t0}, {t0}, {t1}"); a(f"s_add_u32 {t0}, {t0}, {WS_OM}")
    a(f"s_lshl_b32 {t1}, s{sHEAD}, 14"); a(f"s_lshl_b32 {t2}, {t2}, 8"); a(f"s_add_u32 {t1}, {t1}, {t2}"); a(f"s_add_u32 {t1}, {t1}, {WS_OX}")
    a(f"buffer_store_dwordx4 v[16:19], v14, {srd(sWS)}, {t0} offen sc1")
    a("s_mov_b32 exec_lo, -1"); a("s_mov_b32 exec_hi, 0")
    a(f"buffer_store_dwordx2 v[20:21], v15, {srd(sWS)}, {t1} offen sc1")
    a("s_mov_b64 exec, -1")
    a("s_waitcnt vmcnt(0)"); a("s_barrier")
    ST(7)

    RT, KH = "s3", "s93"
    a(f"s_and_b32 {RT}, s{sWAVE}, 3"); a(f"s_lshr_b32 {KH}, s{sWAVE}, 2")
    a(f"s_cmp_lg_u32 s{sWAVE}, 0"); a("s_cbranch_scc1 L_o_nosig")
    a(f"s_lshl_b32 {t0}, s2, 7"); a(f"s_add_u32 {t0}, {t0}, {FL_O}"); a("v_mov_b32 v2, 0"); a("v_mov_b32 v3, 1")
    a("s_mov_b64 exec, 1")
    a(f"buffer_store_dword v3, v2, {srd(sWS)}, {t0} offen sc1")
    a("s_mov_b64 exec, -1")
    a("L_o_nosig:")
    load_top2()
    a(f"s_lshl_b32 {t0}, s{sTQ}, 1"); a(f"s_add_u32 {t0}, {t0}, s{sHG}"); a(f"s_lshl_b32 {t0}, {t0}, 8")
    a(f"s_lshl_b32 {t1}, s{sI}, 6"); a(f"s_add_u32 {t0}, {t0}, {t1}"); a(f"s_lshl_b32 {t1}, {RT}, 4"); a(f"s_add_u32 s98, {t0}, {t1}")
    a("v_and_b32 v10, 15, v0"); a("v_lshrrev_b32 v11, 4, v0")
    a("v_add_u32 v12, s98, v10")
    a("v_lshlrev_b32 v2, 4, v12"); a("v_lshl_add_u32 v2, v11, 15, v2")
    a("v_lshlrev_b32 v3, 3, v12"); a("v_lshl_add_u32 v3, v11, 14, v3")
    a("v_lshlrev_b32 v4, 2, v12")
    a("v_mul_u32_u24 v5, 1280, v12"); a("v_lshl_add_u32 v6, v11, 3, v5")
    a(f"s_mul_i32 s99, s{sJ}, 160"); a(f"s_mul_i32 {t0}, {KH}, 96"); a(f"s_add_u32 s99, s99, {t0}")
    for k in range(3): a(f"buffer_load_dwordx2 v[{14+2*k}:{15+2*k}], v6, {srd(sX)}, s99 offen offset:{32*k}")
    a("v_bfe_u32 v13, v0, 2, 2"); a("v_bfe_u32 v20, v0, 4, 1"); a("v_lshl_add_u32 v20, v20, 2, v13"); a("v_lshrrev_b32 v21, 5, v0")
    a("v_mad_u32_u24 v20, v21, 20, v20"); a("v_mul_u32_u24 v20, 160, v20"); a("v_and_b32 v21, 3, v0"); a("v_lshlrev_b32 v21, 3, v21")
    a(f"s_mul_i32 {t0}, {KH}, {320*160}"); a(f"s_add_u32 {t0}, {t0}, {L_WO}"); a(f"v_add3_u32 v7, v20, v21, {t0}")
    a("v_mad_u32_u24 v20, v11, 20, v13"); a("v_mul_u32_u24 v20, 160, v20"); a(f"v_add3_u32 v8, v20, v21, {t0}")
    BF = lambda b, ct: 100 + b*20 + ct*4
    NB = 4
    def readB(s):
        b = s % NB
        for ct in range(5):
            for jj in range(2):
                r = BF(b, ct) + 2*jj
                if s < 8: a(f"ds_read_b64_tr_b16 v[{r}:{r+1}], v7 offset:{(40*s + 8*jj)*160 + 32*ct}")
                else: a(f"ds_read_b64_tr_b16 v[{r}:{r+1}], v8 offset:{(160*(s-8) + 80*jj + 16)*160 + 32*ct}")
    for s in range(NB-1):
        readB(s); a("s_waitcnt lgkmcnt(0)")
    a(f"s_cmp_lg_u32 s{sWAVE}, 4"); a("s_cbranch_scc1 L_ffb_skip")
    a(f"s_cmp_ge_u32 s{sIDX}, 30"); a("s_cbranch_scc1 L_ffb_skip")
    a(f"s_sub_u32 {t0}, s{sIDX}, s{sKS}"); a(f"s_lshl_b32 {t0}, {t0}, 3"); a(f"s_add_u32 {t0}, {t0}, s{sXCD}"); a(f"s_lshl_b32 {t0}, {t0}, 7"); a(f"s_add_u32 {t0}, {t0}, {FL_A}")
    a("v_lshrrev_b32 v20, 2, v0"); a("v_min_u32 v20, 9, v20"); a("v_lshlrev_b32 v20, 10, v20"); a("v_and_b32 v21, 3, v0"); a("v_lshl_add_u32 v20, v21, 2, v20")
    poll(f"buffer_load_dword v21, v20, {srd(sWS)}, {t0} offen sc1", "v_cmp_ne_u32 vcc, 1, v21")
    a("v_lshlrev_b32 v20, 4, v0"); a(f"s_mul_i32 {t0}, s{sFG}, 10240"); a(f"s_add_u32 {t0}, {t0}, {WS_FA}")
    for k in range(10):
        a(f"buffer_load_dwordx4 v[{40+4*k}:{43+4*k}], v20, {srd(sWS)}, {t0} offen offset:{(k&3)*1024} sc1")
        if k & 3 == 3: a(f"s_add_u32 {t0}, {t0}, 4096")
    for k in range(1, 10):
        a(f"s_waitcnt vmcnt({9-k})")
        for c in range(4): a(f"v_add_f32 v{40+c}, v{40+c}, v{40+4*k+c}")
    for c in range(4):
        a(f"v_cvt_pk_bf16_f32 v{40+c}, 0, v{40+c}"); a(f"v_mov_b32 v{44+c}, v{40+c}")
    for c in range(4): a(f"v_permlane32_swap_b32 v{40+c}, v{44+c}")
    for c in range(4):
        a(f"v_mul_f32 v48, {f2u(-math.log2(math.e))}, v{40+c}"); a("v_exp_f32 v48, v48"); a("v_add_f32 v48, 1.0, v48"); a("v_rcp_f32 v48, v48")
        a(f"v_mul_f32 v{40+c}, v{40+c}, v48"); a(f"v_cvt_pk_bf16_f32 v{40+c}, 0, v{40+c}"); a(f"v_mul_f32 v{40+c}, v{40+c}, v{44+c}")
    a("v_cvt_pk_bf16_f32 v40, v40, v41"); a("v_cvt_pk_bf16_f32 v41, v42, v43")
    a("v_and_b32 v20, 31, v0"); a("v_lshlrev_b32 v20, 3, v20"); a(f"v_add_u32 v20, {L_MISC}, v20")
    a("ds_write_b64 v20, v[40:41]")
    a("v_and_b32 v20, 1, v0"); a("v_lshlrev_b32 v20, 7, v20"); a("v_and_b32 v21, 48, v0"); a("v_add_u32 v22, v20, v21")
    a("s_waitcnt lgkmcnt(0)")
    a(f"ds_read_b128 v[44:47], v22 offset:{L_MISC}"); a(f"ds_read_b128 v[48:51], v22 offset:{L_MISC+64}")
    a("v_mul_u32_u24 v20, 480, v20"); a("v_add_u32 v20, v20, v21")
    a(f"s_mul_i32 {t0}, s{sFG}, 2560"); a(f"s_lshl_b32 {t1}, s{sKS}, 8"); a(f"s_add_u32 {t0}, {t0}, {t1}"); a(f"s_add_u32 {t0}, {t0}, {WS_FB}")
    a("s_waitcnt lgkmcnt(0)")
    for ct in range(4): a(f"v_mfma_f32_16x16x32_bf16 v[{52+4*ct}:{55+4*ct}], v[{224+8*ct}:{227+8*ct}], v[44:47], 0")
    for ct in range(4): a(f"v_mfma_f32_16x16x32_bf16 v[{52+4*ct}:{55+4*ct}], v[{228+8*ct}:{231+8*ct}], v[48:51], v[{52+4*ct}:{55+4*ct}]")
    a("s_mov_b32 exec_lo, 0x00030003"); a("s_mov_b32 exec_hi, 0x00030003")
    for ct in range(4): a(f"buffer_store_dwordx4 v[{52+4*ct}:{55+4*ct}], v20, {srd(sWS)}, {t0} offen offset:{64*ct} sc1")
    a("s_mov_b64 exec, 1")
    a(f"s_lshl_b32 {t0}, s2, 7"); a(f"s_add_u32 {t0}, {t0}, {FL_B}"); a("v_mov_b32 v20, 0"); a("v_mov_b32 v21, 1")
    a("s_waitcnt vmcnt(0)")
    a(f"buffer_store_dword v21, v20, {srd(sWS)}, {t0} offen sc1")
    a("s_mov_b64 exec, -1")
    a("L_ffb_skip:")
    a(f"s_cmp_lg_u32 s{sWAVE}, 0"); a("s_cbranch_scc1 L_o_nopoll")
    a("s_mov_b32 exec_lo, -1"); a("s_mov_b32 exec_hi, 0")
    a("v_lshlrev_b32 v20, 4, v10"); a("v_lshl_add_u32 v20, v11, 2, v20")
    a(f"s_lshl_b32 {t0}, s{sHG}, 3"); a(f"s_add_u32 {t0}, {t0}, s{sTQ}"); a(f"v_add_u32 v20, {t0}, v20"); a("v_lshlrev_b32 v20, 7, v20")
    a(f"s_mov_b32 {t0}, {FL_O}")
    poll(f"buffer_load_dword v21, v20, {srd(sWS)}, {t0} offen sc1", "v_cmp_ne_u32 vcc, 1, v21")
    a("s_mov_b64 exec, -1")
    a("L_o_nopoll:")
    a(f"s_lshl_b32 {t0}, {KH}, 20"); a(f"s_add_u32 {t0}, {t0}, {WS_OM}")
    a(f"s_lshl_b32 {t1}, {KH}, 18"); a(f"s_add_u32 {t1}, {t1}, {WS_OX}")
    a(f"s_mov_b32 {t2}, {WS_G}")
    a("s_waitcnt vmcnt(0)")
    a("s_barrier")
    ST(8)
    AF = lambda s: 40 + 4*s
    for s in range(8):
        a(f"buffer_load_dwordx4 v[{AF(s)}:{AF(s)+3}], v2, {srd(sWS)}, {t0} offen sc1")
        if s < 7: a(f"s_add_u32 {t0}, {t0}, {1 << 17}")
    for s in range(8, 10):
        for jj in range(2):
            a(f"buffer_load_dwordx2 v[{AF(s)+2*jj}:{AF(s)+2*jj+1}], v3, {srd(sWS)}, {t1} offen sc1")
            a(f"s_add_u32 {t1}, {t1}, {1 << 16}")
    a(f"buffer_load_dword v9, v4, {srd(sWS)}, {t2} offen sc1")
    AC = lambda ct: f"v[{80+4*ct}:{83+4*ct}]"
    for s in range(10):
        left = 12 - s if s < 8 else (3 if s == 8 else 1)
        if s + NB - 1 < 10:
            a("s_waitcnt lgkmcnt(5)"); readB(s + NB - 1); a(f"s_waitcnt vmcnt({left})")
        else: a(f"s_waitcnt vmcnt({left}) lgkmcnt(0)")
        for ct in range(5):
            r = BF(s % NB, ct)
            a(f"v_mfma_f32_16x16x32_bf16 {AC(ct)}, v[{r}:{r+3}], v[{AF(s)}:{AF(s)+3}], {AC(ct) if s else '0'}")
    ST(9)
    a("v_lshlrev_b32 v20, 4, v0"); a(f"s_mul_i32 {t0}, {RT}, 5120"); a(f"s_add_u32 {t0}, {t0}, {L_RED}"); a(f"v_add_u32 v20, {t0}, v20")
    a(f"s_cmp_eq_u32 {KH}, 0"); a("s_cbranch_scc1 L_x0")
    for ct in range(3): a(f"ds_write_b128 v20, {AC(ct)} offset:{ct*1024}")
    for c in range(8): a(f"v_mov_b32 v{80+c}, v{92+c}")
    a("v_add_u32 v20, 3072, v20")
    a("s_branch L_x1")
    a("L_x0:")
    for ct in range(3, 5): a(f"ds_write_b128 v20, {AC(ct)} offset:{ct*1024}")
    a("L_x1:")
    a("s_waitcnt lgkmcnt(0)"); a("s_barrier")
    for k in range(3): a(f"ds_read_b128 v[{40+4*k}:{43+4*k}], v20 offset:{k*1024}")
    for k in range(6):
        a(f"v_lshlrev_b32 v{60+2*k}, 16, v{14+k}"); a(f"v_and_b32 v{61+2*k}, 0xffff0000, v{14+k}")
    for tk in range(2):
        sk = (sK0, sK1)[tk]; skip = lab("ysk")
        a(f"s_not_b32 {t0}, s{sk}"); a(f"s_and_b32 {t0}, {t0}, 2047"); a(f"s_sub_u32 {t0}, {t0}, s98"); a(f"s_cmp_ge_u32 {t0}, 16"); a(f"s_cbranch_scc1 {skip}")
        a(f"s_lshr_b32 {t1}, s99, 7"); a(f"s_add_u32 {t2}, s99, 95"); a(f"s_lshr_b32 {t2}, {t2}, 7"); a(f"s_min_u32 {t2}, {t2}, 9")
        a("v_and_b32 v21, 31, v0"); a("v_min_u32 v21, 23, v21"); a("v_mul_u32_u24 v22, 86, v21"); a("v_lshrrev_b32 v22, 8, v22")
        a("v_mul_u32_u24 v23, 3, v22"); a("v_sub_u32 v23, v21, v23"); a("v_mul_u32_u24 v23, 10, v23")
        a(f"v_mov_b32 v24, {t1}"); a(f"v_mov_b32 v25, {t2}"); a("v_cmp_lt_u32 vcc, 31, v0"); a("v_cndmask_b32 v24, v24, v25, vcc")
        a("v_add_u32 v23, v23, v24"); a("v_lshl_add_u32 v23, v23, 3, v22"); a("v_lshlrev_b32 v23, 7, v23")
        a(f"s_mov_b32 {t1}, {FL_B}")
        poll(f"buffer_load_dword v24, v23, {srd(sWS)}, {t1} offen sc1", "v_cmp_ne_u32 vcc, 1, v24")
        a("v_mul_u32_u24 v21, 2560, v10"); a("v_lshl_add_u32 v21, v11, 4, v21")
        a(f"s_lshl_b32 {t1}, s99, 1"); a(f"s_add_u32 {t1}, {t1}, {WS_FB + tk*61440}"); a(f"s_add_u32 {t2}, {t1}, {16*2560}")
        for c in range(12): a(f"v_mov_b32 v{112+c}, 0")
        for k in range(3): a(f"buffer_load_dwordx4 v[{100+4*k}:{103+4*k}], v21, {srd(sWS)}, {t1} offen offset:{64*k} sc1")
        a("s_mov_b32 exec_lo, 0x00ff00ff"); a("s_mov_b32 exec_hi, 0x00ff00ff")
        for k in range(3): a(f"buffer_load_dwordx4 v[{112+4*k}:{115+4*k}], v21, {srd(sWS)}, {t2} offen offset:{64*k} sc1")
        a("s_mov_b64 exec, -1")
        a(f"s_and_b32 {t1}, s{sk}, 0xffff0000"); a(f"s_ashr_i32 {t2}, {t1}, 31"); a(f"s_not_b32 {t2}, {t2}"); a(f"s_or_b32 {t2}, {t2}, 0x80000000")
        a(f"s_xor_b32 {t1}, {t1}, {t2}"); a(f"s_and_b32 {t1}, {t1}, 0xffff0000")
        a(f"v_mov_b32 v22, {f2u(-math.log2(math.e))}"); a(f"v_mul_f32 v22, {t1}, v22"); a("v_exp_f32 v22, v22"); a("v_add_f32 v22, 1.0, v22"); a("v_rcp_f32 v22, v22")
        a(f"v_cmp_eq_u32 vcc, {t0}, v10"); a("v_cndmask_b32 v22, 0, v22, vcc")
        a("s_waitcnt vmcnt(0)")
        for c in range(12): a(f"v_add_f32 v{100+c}, v{100+c}, v{112+c}")
        for sh in (8, 4, 2, 1):
            for c in range(12): a(f"v_add_f32_dpp v{100+c}, v{100+c}, v{100+c} row_ror:{sh} row_mask:0xf bank_mask:0xf")
        a("s_and_saveexec_b64 s[96:97], vcc")
        for c in range(12): a(f"v_fmac_f32 v{60+c}, v22, v{100+c}")
        a("s_mov_b64 exec, -1")
        a(f"{skip}:")
    a("s_waitcnt vmcnt(0) lgkmcnt(0)")
    for c in range(12):
        a(f"v_add_f32 v{80+c}, v{80+c}, v{40+c}"); a(f"v_sub_f32 v{80+c}, v{80+c}, v{60+c}"); a(f"v_fma_f32 v{80+c}, v9, v{80+c}, v{60+c}")
    for k in range(6): a(f"v_cvt_pk_bf16_f32 v{40+k}, v{80+2*k}, v{81+2*k}")
    a("v_bfe_u32 v21, v0, 4, 1"); a("v_lshl_add_u32 v21, v21, 5, v5"); a("v_lshrrev_b32 v22, 5, v0"); a("v_lshl_add_u32 v21, v22, 4, v21")
    a("v_permlane16_swap_b32 v40, v42"); a("v_permlane16_swap_b32 v41, v43")
    a(f"buffer_store_dwordx4 v[40:43], v21, {srd(sOUT)}, s99 offen")
    a(f"s_cmp_lg_u32 {KH}, 0"); a("s_cbranch_scc1 L_fin")
    a(f"buffer_store_dwordx2 v[44:45], v6, {srd(sOUT)}, s99 offen offset:64")
    a("L_fin:")
    if stamp:
        a("s_waitcnt vmcnt(0)")
        ST(10)
        a("s_waitcnt lgkmcnt(0)")
        a(f"s_lshl_b32 {t0}, s2, 3"); a(f"s_add_u32 {t0}, {t0}, s{sWAVE}"); a(f"s_lshl_b32 {t0}, {t0}, 6"); a(f"s_add_u32 {t0}, {t0}, {WS_STAMP}")
        a("v_mov_b32 v2, 0"); a("s_mov_b64 exec, 1")
        for k in range(12):
            a(f"v_mov_b32 v3, s{94 if k == 11 else sST+2*k}")
            a(f"buffer_store_dword v3, v2, {srd(sWS)}, {t0} offen offset:{4*k}")
    a("L_end:")
    a("s_endpgm")
    body, pads = a.finish()
    head = open(f"cdna_kernels/{NAME}.s.ref").read().split("; Override launch geometry")[0]
    txt = head + f"; @launch grid=(256,1,1) block=(512,1,1) lds={LDS_BYTES}\n"
    txt += f'.amdgcn_target "amdgcn-amd-amdhsa--gfx950"\n.text\n.globl {NAME}_kernel\n.p2align 8\n.type {NAME}_kernel,@function\n{NAME}_kernel:\n'
    txt += body + "L_code_end:\n"
    txt = txt.replace("CODE_BYTES", f"L_code_end-{NAME}_kernel-64")
    txt += f""".section .rodata,"a"
.p2align 6
.amdhsa_kernel {NAME}_kernel
  .amdhsa_next_free_vgpr 256
  .amdhsa_next_free_sgpr 102
  .amdhsa_accum_offset 256
  .amdhsa_group_segment_fixed_size 0
  .amdhsa_kernarg_size 96
  .amdhsa_user_sgpr_count 2
  .amdhsa_user_sgpr_kernarg_segment_ptr 1
  .amdhsa_system_sgpr_workgroup_id_x 1
.end_amdhsa_kernel
"""
    return txt

if __name__ == "__main__":
    out = sys.argv[1] if len(sys.argv) > 1 else f"cdna_kernels/{NAME}.s"
    open(out, "w").write(gen(stamp="--stamp" in sys.argv, opts=dict(force_fallback="--fb" in sys.argv)))
    print("wrote", out)
```
